```python
import torch

def _softmax(x, axis=-1):
    return torch.softmax(x, dim=axis)

def _gelu(x):
    return torch.nn.functional.gelu(x, approximate='tanh')

def _silu(x):
    return torch.nn.functional.silu(x)

def _sigmoid(x):
    return torch.sigmoid(x)

def _layernorm(x, axis=-1, eps=1e-05):
    m = x.mean(dim=axis, keepdim=True)
    v = x.var(dim=axis, keepdim=True, unbiased=False)
    return (x - m) / torch.sqrt(v + eps)

def _scatter_add(tgt, idx, src, axis=0):
    return tgt.clone().index_add_(axis, idx, src)

def _segment_sum(src, seg, n):
    out = torch.zeros((n,) + src.shape[1:], dtype=src.dtype)
    return out.index_add_(0, seg, src)

def _pad(x, pw):
    flat = tuple((v for pair in reversed(pw) for v in pair))
    return torch.nn.functional.pad(x, flat)
kernel_name = 'interleave_layers__memory_aug_recurrent_mem_tr__sliding_local_dilated__prompt'

def setup_inputs():

    _w = lambda a: (lambda t: t.to(torch.bfloat16) if t.is_floating_point() else t)(torch.as_tensor(a))

    def _A_setup():
        B, S, Dm = (1, 2048, 640)
        H, Dh = (32, 192)
        M, seg = (8, 32)
        seg = min(seg, S)
        S = S // seg * seg
        return {'x': _w((lambda *s: torch.randn(*s, dtype=torch.bfloat16) * 0.05)(B, S, Dm)), 'mem0': _w((lambda *s: torch.randn(*s, dtype=torch.bfloat16) * 0.8)(B, M, Dm)), 'Wq': _w((lambda *s: torch.randn(*s, dtype=torch.bfloat16) * 1.6)(Dm, H, Dh) * Dm ** (-0.5)), 'Wk': _w((lambda *s: torch.randn(*s, dtype=torch.bfloat16) * 1.6)(Dm, H, Dh) * Dm ** (-0.5)), 'Wv': _w((lambda *s: torch.randn(*s, dtype=torch.bfloat16) * 0.8)(Dm, H, Dh) * Dm ** (-0.5)), 'Wo': _w((lambda *s: torch.randn(*s, dtype=torch.bfloat16) * 0.8)(H, Dh, Dm) * (H * Dh) ** (-0.5)), 'seg_len': seg}
    _A_in = _A_setup()

    def _B_setup():
        B, S, D = (1, 2048, 640)
        return {'x': _w((lambda *s: torch.randn(*s, dtype=torch.bfloat16) * 0.05)(B, S, D)), 'wqkv': _w((lambda *s: torch.randn(*s, dtype=torch.bfloat16) * 0.05)(D, 3 * D)), 'wo': _w((lambda *s: torch.randn(*s, dtype=torch.bfloat16) * 0.05)(D, D))}
    _B_in = _B_setup()
    return {'A_x': _A_in['x'], 'A_mem0': _A_in['mem0'], 'A_Wq': _A_in['Wq'], 'A_Wk': _A_in['Wk'], 'A_Wv': _A_in['Wv'], 'A_Wo': _A_in['Wo'], 'A_seg_len': _A_in['seg_len'], 'B_x': _B_in['x'], 'B_wqkv': _B_in['wqkv'], 'B_wo': _B_in['wo']}

def reference(A_x, A_mem0, A_Wq, A_Wk, A_Wv, A_Wo, A_seg_len, B_x, B_wqkv, B_wo):

    def _A_ref(x, mem0, Wq, Wk, Wv, Wo, seg_len):
        B, S, Dm = x.shape
        H, Dh = (Wq.shape[1], Wq.shape[2])
        M = mem0.shape[1]
        scale = Dh ** (-0.5)
        n_seg = S // seg_len
        L = M + seg_len
        idx = torch.arange(L)
        mask = (idx[:, None] < M) | (idx[:, None] >= idx[None, :])
        mem = mem0
        outs = []
        for s in range(n_seg):
            xs = x[:, s * seg_len:(s + 1) * seg_len, :].clone()
            h = torch.concatenate([mem, xs], axis=1)
            q = torch.einsum('btd,dhe->bhte', h, Wq)
            k = torch.einsum('btd,dhe->bhte', h, Wk)
            v = torch.einsum('btd,dhe->bhte', h, Wv)
            scores = torch.einsum('bhqe,bhke->bhqk', q, k) * scale
            scores = torch.where(mask[None, None], scores, -1000000000.0)
            p = _softmax(scores, axis=-1)
            o = torch.einsum('bhqk,bhke->bhqe', p, v)
            o = torch.einsum('bhte,hed->btd', o, Wo)
            mem = o[:, :M, :].clone()
            outs.append(o[:, M:, :])
        return torch.concatenate(outs, axis=1)

    def _B_ref(x, wqkv, wo):
        B, S, D = x.shape
        H = 32
        Dh = D // H
        W, dil = (8, 2)
        qkv = (lambda x, *d: x.permute(*d))((x @ wqkv).reshape(B, S, 3, H, Dh), 2, 0, 3, 1, 4)
        q, k, v = (qkv[0], qkv[1], qkv[2])
        scale = Dh ** (-0.5)
        pos = torch.arange(S)
        off = torch.arange(W) * dil
        idx = pos[:, None] - off[None, :]
        mask = idx >= 0
        idx_c = torch.where(mask, idx, 0).reshape(-1)
        kg = k[:, :, idx_c, :].reshape(B, H, S, W, Dh)
        vg = v[:, :, idx_c, :].reshape(B, H, S, W, Dh)
        logits = torch.einsum('bhsd,bhswd->bhsw', q, kg) * scale
        logits = torch.where(mask[None, None, :, :], logits, -1000000000.0)
        attn = _softmax(logits, axis=-1)
        o = torch.einsum('bhsw,bhswd->bhsd', attn, vg)
        return (lambda x, *d: x.permute(*d))(o, 0, 2, 1, 3).reshape(B, S, D) @ wo
    x = A_x
    x = x + _A_ref(_layernorm(x, axis=-1), A_mem0, A_Wq, A_Wk, A_Wv, A_Wo, A_seg_len)
    x = x + _B_ref(_layernorm(x, axis=-1), B_wqkv, B_wo)
    x = x + _A_ref(_layernorm(x, axis=-1), A_mem0, A_Wq, A_Wk, A_Wv, A_Wo, A_seg_len)
    x = x + _B_ref(_layernorm(x, axis=-1), B_wqkv, B_wo)
    return x
```

```python
import re

REG_RE = re.compile(r'^-?\|?(?:abs\()?([vas])(?:(\d+)|\[(\d+):(\d+)\])\)?\|?$')
SPECIAL = {'vcc': [('s', 'vcc')], 'vcc_lo': [('s', 'vcc')], 'vcc_hi': [('s', 'vcc')],
           'exec': [('s', 'exec')], 'exec_lo': [('s', 'exec')], 'exec_hi': [('s', 'exec')],
           'm0': [('s', 'm0')]}
TRANS = ('v_exp_f32', 'v_log_f32', 'v_rcp_f32', 'v_rsq_f32', 'v_sqrt_f32', 'v_sin_f32', 'v_cos_f32', 'v_rcp_iflag_f32')


def regs_of(tok):
    tok = tok.strip()
    if tok in SPECIAL:
        return list(SPECIAL[tok])
    m = REG_RE.match(tok)
    if not m:
        return []
    k = m.group(1)
    if m.group(2) is not None:
        return [(k, int(m.group(2)))]
    return [(k, i) for i in range(int(m.group(3)), int(m.group(4)) + 1)]


def split_ops(s):
    out, depth, cur = [], 0, ''
    for ch in s:
        if ch in '[(':
            depth += 1
        if ch in '])':
            depth -= 1
        if ch == ',' and depth == 0:
            out.append(cur.strip())
            cur = ''
        else:
            cur += ch
    if cur.strip():
        out.append(cur.strip())
    return out


class Ins:
    def __init__(self, text):
        self.text = text
        self.pre_nop = 0
        self.pre_vm = None
        self.pre_lg = None
        t = text.split(';')[0].strip()
        parts = t.split(None, 1)
        self.op = op = parts[0]
        ops = split_ops(parts[1]) if len(parts) > 1 else []
        mods = []
        if ops and not op.startswith('s_waitcnt') and not op.startswith('s_getreg'):
            last = ops[-1].split()
            ops[-1] = last[0]
            mods = last[1:]
        self.ops, self.mods = ops, mods
        R = [regs_of(o) for o in ops]
        self.r, self.w = [], []
        self.is_mfma = op.startswith('v_mfma') or op.startswith('v_smfmac')
        self.is_valu = op.startswith('v_') and not self.is_mfma
        self.is_ds = op.startswith('ds_')
        self.is_vm = op.startswith('buffer_') or op.startswith('global_')
        self.is_smem = op.startswith('s_load') or op.startswith('s_memtime') or op.startswith('s_memrealtime')
        self.is_branch = op.startswith('s_branch') or op.startswith('s_cbranch')
        self.is_dpp = op.endswith('_dpp')
        self.is_perm = op.startswith('v_permlane')
        self.is_rdlane = op.startswith('v_readlane') or op.startswith('v_readfirstlane')
        self.is_trans = any(op.startswith(x) for x in TRANS)
        self.is_dot = op.startswith('v_dot')
        self.is_dma = self.is_vm and 'lds' in mods
        self.load_dst = []
        self.srcA = self.srcB = self.srcC = []
        self.passes = 0
        self.wide_data = []
        flat = lambda L: [x for l in L for x in l]
        if self.is_mfma:
            self.w = R[0]
            self.srcA, self.srcB = R[1], R[2]
            if op.startswith('v_smfmac'):
                self.srcC = R[0]
                self.srcB = R[2] + R[3]
            else:
                self.srcC = R[3]
            self.r = self.srcA + self.srcB + self.srcC
            self.sgemm = op.endswith('_f32')
            if self.sgemm:
                assert '16x16x4' in op
                self.passes = 8
            else:
                self.passes = 8 if '32x32' in op else 4
        elif self.is_valu:
            if self.is_perm:
                self.w = R[0] + R[1]
                self.r = R[0] + R[1]
            elif op.startswith('v_nop'):
                pass
            else:
                assert '_co_' not in op and 'cmpx' not in op, op
                self.w = R[0]
                self.r = flat(R[1:])
                if op.startswith('v_fmac') or op.startswith('v_dot2c') or self.is_dpp or op.startswith('v_writelane'):
                    self.r += R[0]
        elif self.is_ds:
            if op.startswith('ds_read') or op.startswith('ds_bpermute') or op.startswith('ds_swizzle'):
                self.load_dst = R[0]
                self.w = R[0]
                self.r = flat(R[1:])
            else:
                self.r = flat(R)
        elif self.is_vm:
            if self.is_dma:
                self.r = flat(R) + [('s', 'm0')]
            elif '_load_' in op:
                self.load_dst = R[0]
                self.w = R[0]
                self.r = flat(R[1:])
            elif '_atomic_' in op:
                self.r = flat(R)
                if 'sc0' in mods:
                    self.load_dst = R[0]
                    self.w = R[0]
            elif '_store_' in op:
                self.r = flat(R)
                if 'dwordx4' in op or 'dwordx3' in op:
                    self.wide_data = R[0]
            else:
                self.r = flat(R)
        elif self.is_smem:
            self.load_dst = R[0]
            self.w = R[0]
            self.r = flat(R[1:])
        elif op.startswith('s_'):
            if op.startswith('s_cmp') or op.startswith('s_bitcmp'):
                self.r = flat(R)
            elif self.is_branch:
                if 'vcc' in op:
                    self.r = [('s', 'vcc')]
            elif op in ('s_waitcnt', 's_nop', 's_barrier', 's_endpgm', 's_sleep', 's_setprio'):
                pass
            else:
                self.w = R[0] if R else []
                self.r = flat(R[1:])
                if op.startswith('s_addk') or op.startswith('s_mulk') or op.startswith('s_bitset'):
                    self.r += R[0]
                if 'saveexec' in op:
                    self.w = self.w + [('s', 'exec')]
        else:
            raise ValueError('unknown instruction: ' + text)
        self.rs, self.ws = set(self.r), set(self.w)

    def states(self):
        if self.op == 's_nop':
            return int(self.ops[0], 0) + 1
        return 1


class State:
    def __init__(self):
        self.haz, self.vm, self.lg, self.smem = {}, {}, {}, False

    def copy(self):
        s = State()
        s.haz, s.vm, s.lg, s.smem = dict(self.haz), dict(self.vm), dict(self.lg), self.smem
        return s

    def merge(self, o):
        ch = False
        for mine, other in ((self.haz, o.haz), (self.vm, o.vm), (self.lg, o.lg)):
            for k, v in other.items():
                if k not in mine or v < mine[k]:
                    mine[k] = v
                    ch = True
        if o.smem and not self.smem:
            self.smem = True
            ch = True
        return ch

    def age(self, n):
        self.haz = {k: v + n for k, v in self.haz.items() if v + n < 24}


def need(kind, reg, I):
    rd, wr = reg in I.rs, reg in I.ws
    if not (rd or wr):
        return 0
    k = kind[0]
    if k == 'valu' or k == 'trans' or k == 'dot':
        n = 0
        if rd and I.is_mfma:
            n = 2
        if rd and (I.is_dpp or I.is_perm):
            n = 2
        if rd and I.is_rdlane:
            n = max(n, 1)
        if k == 'trans' and rd and (I.is_valu or I.is_vm or I.is_ds):
            n = max(n, 1)
        if k == 'dot':
            same_c = I.is_dot and I.op == kind[1] and reg not in set(regs_of(I.ops[1]) + regs_of(I.ops[2]))
            if not same_c:
                n = max(n, 3)
        return n
    if k == 'mfma':
        _, passes, sgemm, rng, op = kind
        if I.is_mfma:
            n = 0
            if reg in I.srcA or reg in I.srcB:
                n = passes + 2 if sgemm else passes + 4
            if reg in I.srcC:
                if tuple(I.srcC) == rng and I.op == op:
                    pass
                elif sgemm:
                    n = max(n, passes if I.sgemm else 0)
                else:
                    n = max(n, passes + 2)
            elif wr and I.passes != passes:
                n = max(n, passes + 4)
            return n
        return passes + 2 if sgemm else passes + 4
    if k == 'mfmaC':
        return kind[1] - 1 if (wr and I.is_valu) else 0
    if k == 'valu_s':
        if rd and I.is_vm:
            return 5
        if rd and I.is_rdlane:
            return 4
        if rd and (I.is_valu or I.is_mfma):
            return 2
        return 0
    if k == 'm0':
        return 1 if I.is_dma else 0
    if k == 'wstore':
        if wr:
            return 2 if I.is_valu else 1
        return 0
    return 0


class Asm:
    def __init__(self):
        self.items = []

    def __call__(self, text):
        for line in text.split('\n'):
            line = line.strip()
            if not line:
                continue
            if line.startswith(';'):
                self.items.append(('raw', '    ' + line))
            elif line.endswith(':'):
                self.items.append(('label', line[:-1]))
            elif line.startswith('.'):
                self.items.append(('raw', line))
            else:
                self.items.append(('ins', Ins(line)))

    def many(self, lines):
        for l in lines:
            self(l)

    def _pass(self, label_in):
        changed = False
        st = State()
        reach = True
        for kind, it in self.items:
            if kind == 'label':
                if it in label_in:
                    if reach:
                        st.merge(label_in[it])
                    else:
                        st = label_in[it].copy()
                elif not reach:
                    st = State()
                reach = True
                continue
            if kind != 'ins':
                continue
            I = it
            if I.op != 's_waitcnt':
                touched = I.rs | I.ws
                nv = min([st.vm[r] for r in touched if r in st.vm], default=None)
                nl = min([st.lg[r] for r in touched if r in st.lg], default=None)
                if nl is not None and st.smem:
                    nl = 0
                if nv is not None:
                    nv = min(nv, 63)
                    if I.pre_vm is None or nv < I.pre_vm:
                        I.pre_vm = nv
                        changed = True
                if nl is not None:
                    nl = min(nl, 15)
                    if I.pre_lg is None or nl < I.pre_lg:
                        I.pre_lg = nl
                        changed = True
                wv, wl = I.pre_vm, I.pre_lg
                if wv is not None or wl is not None:
                    st.age(1)
            else:
                m = re.search(r'vmcnt\((\d+)\)', I.text)
                wv = int(m.group(1)) if m else None
                m = re.search(r'lgkmcnt\((\d+)\)', I.text)
                wl = int(m.group(1)) if m else None
            if wv is not None:
                st.vm = {r: n for r, n in st.vm.items() if n < wv}
            if wl is not None:
                if wl == 0:
                    st.lg, st.smem = {}, False
                elif not st.smem:
                    st.lg = {r: n for r, n in st.lg.items() if n < wl}
            req = 0
            for (reg, hk), age in st.haz.items():
                n = need(hk, reg, I) - age
                if n > req:
                    req = n
            if req > I.pre_nop:
                I.pre_nop = req
                changed = True
            st.age(I.pre_nop + I.states())
            if I.ws:
                st.haz = {k: v for k, v in st.haz.items() if not (k[0] in I.ws and k[1][0] in ('valu', 'trans', 'dot', 'valu_s', 'm0'))}
            if I.is_mfma:
                st.haz = {k: v for k, v in st.haz.items() if not (k[0] in I.ws and k[1][0] == 'mfma')}
                for r in I.w:
                    st.haz[(r, ('mfma', I.passes, I.sgemm, tuple(I.w), I.op))] = 0
                if not I.sgemm:
                    for r in I.srcC:
                        st.haz[(r, ('mfmaC', I.passes))] = 0
            elif I.is_valu:
                for r in I.w:
                    if r[0] == 's':
                        st.haz[(r, ('valu_s',))] = 0
                    elif I.is_trans:
                        st.haz[(r, ('trans',))] = 0
                    elif I.is_dot:
                        st.haz[(r, ('dot', I.op))] = 0
                    else:
                        st.haz[(r, ('valu',))] = 0
            elif ('s', 'm0') in I.ws:
                st.haz[(('s', 'm0'), ('m0',))] = 0
            for r in I.wide_data:
                st.haz[(r, ('wstore',))] = 0
            if I.is_vm:
                st.vm = {r: n + 1 for r, n in st.vm.items()}
                for r in I.load_dst:
                    st.vm[r] = 0
            if I.is_ds or I.is_smem:
                st.lg = {r: n + 1 for r, n in st.lg.items()}
                for r in I.load_dst:
                    st.lg[r] = 0
                if I.is_smem:
                    st.smem = True
            if I.is_branch:
                tgt = I.ops[0]
                if tgt not in label_in:
                    label_in[tgt] = st.copy()
                    changed = True
                elif label_in[tgt].merge(st):
                    changed = True
                if I.op == 's_branch':
                    reach = False
            if I.op == 's_endpgm':
                reach = False
        return changed

    def text(self):
        label_in = {}
        n = 0
        while self._pass(label_in):
            n += 1
            assert n < 50
        out = []
        self.n_nop = self.n_ins = 0
        for kind, it in self.items:
            if kind == 'raw':
                out.append(it)
            elif kind == 'label':
                out.append(it + ':')
            else:
                w = []
                if it.pre_vm is not None:
                    w.append('vmcnt(%d)' % it.pre_vm)
                if it.pre_lg is not None:
                    w.append('lgkmcnt(%d)' % it.pre_lg)
                if w:
                    out.append('    s_waitcnt ' + ' '.join(w))
                p = it.pre_nop
                while p > 0:
                    q = min(p, 16)
                    out.append('    s_nop %d' % (q - 1))
                    p -= q
                    self.n_nop += 1
                out.append('    ' + it.text)
                self.n_ins += 1
        return '\n'.join(out) + '\n'


def v(n, c=1):
    return 'v%d' % n if c == 1 else 'v[%d:%d]' % (n, n + c - 1)


def a(n, c=1):
    return 'a%d' % n if c == 1 else 'a[%d:%d]' % (n, n + c - 1)


def s(n, c=1):
    return 's%d' % n if c == 1 else 's[%d:%d]' % (n, n + c - 1)


class Alloc:
    def __init__(self, start, limit):
        self.n, self.limit = start, limit

    def __call__(self, cnt=1, align=None):
        if align is None:
            align = 1 if cnt == 1 else 2
        self.n = (self.n + align - 1) // align * align
        r = self.n
        self.n += cnt
        assert self.n <= self.limit, 'out of registers'
        return r


def weave(main, extra, start=0, every=1):
    out, j = [], 0
    for i, l in enumerate(main):
        out.append(l)
        if i >= start and (i - start) % every == 0 and j < len(extra):
            e = extra[j]
            out.extend(e if isinstance(e, (list, tuple)) else [e])
            j += 1
    for e in extra[j:]:
        out.extend(e if isinstance(e, (list, tuple)) else [e])
    return out
```

```python
import sys, math, struct
from asmdsl import *

NAME = 'interleave_layers__memory_aug_recurrent_mem_tr__sliding_local_dilated__prompt'
MB = 1 << 20
RING, FLAGS, DBG = 0, 8 * MB, 9 * MB
HA, HB, X1B, X2B = 16 * MB, 22 * MB, 28 * MB, 34 * MB
OX, PA, PB = 40 * MB, 88 * MB, 128 * MB
XSZ = 2048 * 1280
TILE = 32 * 1280
SLOT = 256 * 1024
R_X1M, R_X1X, R_X2, R_AG, R_X3 = 0, 30720, 153600, 178176, 188416
OOB = 0x80000000


def f2u(x):
    return '0x%08x' % struct.unpack('<I', struct.pack('<f', x))[0]


class Opt:
    stamps = False
    roles = 'CTBR'
    layers = 2


S_WS, S_DBG, S_A, S_B, S_C, S_D, S_E = 4, 8, 12, 16, 20, 24, 28
P0 = 32
P_X, P_MEM0, P_WQ, P_WK, P_WV, P_WO, P_WQKV, P_BWO, P_OUT, P_DBG, P_WS = (P0 + 2 * i for i in (0, 1, 2, 3, 4, 5, 8, 9, 10, 11, 12))
sX, sT, sW, sTO, sS, sFLAG, sT0, sT1, sT2, sT3, sL, sHG = range(58, 70)
S_FREE = 70
WS, DBGS = s(S_WS, 4), s(S_DBG, 4)


def srd(k, dst, ptr, nbytes):
    k(f"""s_mov_b32 {s(dst)}, {s(ptr)}
    s_mov_b32 {s(dst+1)}, {s(ptr+1)}
    s_mov_b32 {s(dst+2)}, {nbytes}
    s_mov_b32 {s(dst+3)}, 0x20000""")


class Gen:
    def __init__(self, opt):
        self.o = opt
        self.k = Asm()
        self.ool = []
        self.nlab = 0

    def lab(self, p):
        self.nlab += 1
        return f'L{p}_{self.nlab}'

    def check_sentinel(self, regs, tmp, reissue, code):
        k = self.k
        chk, rty = self.lab('chk'), self.lab('rty')
        k(chk + ':')
        regs = list(regs)
        k(f"v_max3_u32 {v(tmp)}, {v(regs[0])}, {v(regs[1])}, {v(regs[2])}")
        rest = regs[3:]
        while len(rest) >= 2:
            k(f"v_max3_u32 {v(tmp)}, {v(tmp)}, {v(rest[0])}, {v(rest[1])}")
            rest = rest[2:]
        if rest:
            k(f"v_max_u32 {v(tmp)}, {v(tmp)}, {v(rest[0])}")
        k(f"v_cmp_eq_u32 vcc, -1, {v(tmp)}\ns_cbranch_vccnz {rty}")
        self.ool.append([rty + ':'] + list(reissue) + self.timeout(code) + ['s_waitcnt vmcnt(0)', f's_branch {chk}'])

    def timeout(self, code):
        return [f"s_sub_u32 {s(sTO)}, {s(sTO)}, 1", f"s_mov_b32 {s(sT3)}, {code}", f"s_cbranch_scc1 L_fail"]

    def check_flags(self, regs4, tmp, want, reissue, code, notready=None):
        k = self.k
        chk, rty = self.lab('fchk'), self.lab('frty')
        k(chk + ':')
        k(f"""v_min3_u32 {v(tmp)}, {v(regs4)}, {v(regs4+1)}, {v(regs4+2)}
        v_min_u32 {v(tmp)}, {v(tmp)}, {v(regs4+3)}
        v_cmp_gt_u32 vcc, {s(want)}, {v(tmp)}""")
        if notready:
            k(f"s_cbranch_vccnz {notready}")
        else:
            k(f"s_cbranch_vccnz {rty}")
            self.ool.append([rty + ':', 's_sleep 1'] + list(reissue) + self.timeout(code) + ['s_waitcnt vmcnt(0)', f's_branch {chk}'])

    def flush_ool(self):
        for b in self.ool:
            self.k.many(b)
        self.ool = []

    def barrier(self):
        self.k("s_waitcnt lgkmcnt(0)\ns_barrier")

    def layernorm(self, pk, f, t):
        k = self.k
        for i in range(10):
            k(f"v_lshlrev_b32 {v(f+2*i)}, 16, {v(pk+i)}\nv_and_b32 {v(f+2*i+1)}, 0xffff0000, {v(pk+i)}")
        k(f"v_add_f32 {v(t)}, {v(f)}, {v(f+1)}\nv_add_f32 {v(t+1)}, {v(f+2)}, {v(f+3)}")
        for i in range(4, 20, 2):
            k(f"v_add_f32 {v(t)}, {v(t)}, {v(f+i)}\nv_add_f32 {v(t+1)}, {v(t+1)}, {v(f+i+1)}")
        k(f"v_add_f32 {v(t)}, {v(t)}, {v(t+1)}")
        self.sum32(t, t + 1)
        k(f"v_mul_f32 {v(t)}, {f2u(1/640)}, {v(t)}")
        for i in range(20):
            k(f"v_sub_f32 {v(f+i)}, {v(f+i)}, {v(t)}")
        k(f"v_mul_f32 {v(t)}, {v(f)}, {v(f)}\nv_mul_f32 {v(t+1)}, {v(f+1)}, {v(f+1)}")
        for i in range(2, 20, 2):
            k(f"v_fmac_f32 {v(t)}, {v(f+i)}, {v(f+i)}\nv_fmac_f32 {v(t+1)}, {v(f+i+1)}, {v(f+i+1)}")
        k(f"v_add_f32 {v(t)}, {v(t)}, {v(t+1)}")
        self.sum32(t, t + 1)
        k(f"""v_mov_b32 {v(t+1)}, {f2u(1e-5)}
        v_fmac_f32 {v(t+1)}, {f2u(1/640)}, {v(t)}
        v_rsq_f32 {v(t)}, {v(t+1)}""")
        for i in range(20):
            k(f"v_mul_f32 {v(f+i)}, {v(f+i)}, {v(t)}")
        for i in range(10):
            k(f"v_cvt_pk_bf16_f32 {v(pk+i)}, {v(f+2*i)}, {v(f+2*i+1)}")

    def sum32(self, x, t):
        k = self.k
        for m in ('quad_perm:[1,0,3,2]', 'quad_perm:[2,3,0,1]', 'row_half_mirror', 'row_mirror'):
            k(f"v_add_f32_dpp {v(x)}, {v(x)}, {v(x)} {m} row_mask:0xf bank_mask:0xf")
        k(f"v_mov_b32 {v(t)}, {v(x)}\nv_permlane16_swap_b32 {v(x)}, {v(t)}\nv_add_f32 {v(x)}, {v(x)}, {v(t)}")

    def arrive(self):
        k = self.k
        skip = self.lab('arr')
        k(f"""v_mov_b32 v2, 0
        v_mov_b32 v3, {s(sFLAG)}
        buffer_store_dword v2, v3, {WS}, 0 offen sc1
        s_waitcnt vmcnt(0)
        s_barrier
        s_cmp_lg_u32 {s(sW)}, 0
        s_cbranch_scc1 {skip}
        s_mov_b64 exec, 1
        v_mov_b32 v2, 1
        v_mov_b32 v3, 20
        buffer_atomic_add v2, v3, {DBGS}, 0 offen
        s_mov_b64 exec, -1
        {skip}:""")

    def wait_grid(self):
        k = self.k
        chk, rty = self.lab('gchk'), self.lab('grty')
        ld = f"buffer_load_dword v2, v3, {DBGS}, 0 offen sc1"
        k(f"""v_mov_b32 v3, 20
        {ld}
        {chk}:
        v_cmp_gt_u32 vcc, 256, v2
        s_cbranch_vccnz {rty}""")
        self.ool.append([rty + ':', 's_sleep 4', ld] + self.timeout(1) + [f's_branch {chk}'])

    def put_flag(self, tmp):
        return [f"s_add_u32 {s(sT0)}, {s(sS)}, 1", f"v_mov_b32 {v(tmp)}, {s(sT0)}", "s_mov_b64 exec, 1",
                f"buffer_store_dword {v(tmp)}, off, {WS}, {s(sFLAG)} sc1", "s_mov_b64 exec, -1"]

    def stamp(self, i):
        if self.o.stamps:
            self.k(f"s_memtime {s(self.sST+2*i, 2)}")

    def stamps_out(self, n, tmp):
        if not self.o.stamps:
            return
        k = self.k
        k(f"""s_waitcnt lgkmcnt(0)
        s_lshl_b32 {s(sT0)}, {s(sX)}, 5
        s_add_u32 {s(sT0)}, {s(sT0)}, {s(sT)}
        s_lshl_b32 {s(sT0)}, {s(sT0)}, 2
        s_add_u32 {s(sT0)}, {s(sT0)}, {s(sW)}
        s_lshl_b32 {s(sT0)}, {s(sT0)}, 6
        s_add_u32 {s(sT0)}, {s(sT0)}, {s(sS)}
        s_lshl_b32 {s(sT0)}, {s(sT0)}, 6
        s_add_u32 {s(sT0)}, {s(sT0)}, {DBG}
        v_mov_b32 {v(tmp)}, 0""")
        for i in range(n):
            k(f"v_writelane_b32 {v(tmp)}, {s(self.sST+2*i)}, {i}")
        k(f"""v_mbcnt_lo_u32_b32 {v(tmp+1)}, -1, 0
        v_mbcnt_hi_u32_b32 {v(tmp+1)}, -1, {v(tmp+1)}
        v_lshlrev_b32 {v(tmp+1)}, 2, {v(tmp+1)}
        s_mov_b64 exec, 0xffff
        buffer_store_dword {v(tmp)}, {v(tmp+1)}, {WS}, {s(sT0)} offen
        s_mov_b64 exec, -1""")

    def prologue(self):
        k = self.k
        k(f"""s_cmp_ge_u32 s2, 256
        s_cbranch_scc1 L_end
        s_load_dwordx16 s[32:47], s[0:1], 0
        s_load_dwordx8 s[48:55], s[0:1], 64
        s_load_dwordx2 s[56:57], s[0:1], 96
        s_getreg_b32 {s(sX)}, hwreg(HW_REG_XCC_ID)
        s_and_b32 {s(sX)}, {s(sX)}, 7
        v_lshrrev_b32 v1, 6, v0
        v_readfirstlane_b32 {s(sW)}, v1
        s_mov_b32 {s(sTO)}, 0x100000
        s_waitcnt lgkmcnt(0)""")
        srd(k, S_WS, P_WS, 256 * MB)
        srd(k, S_DBG, P_DBG, 256)
        srd(k, S_A, P_X, XSZ)
        k(f"""s_cmp_lg_u32 {s(sW)}, 0
        s_cbranch_scc1 L_notick
        s_mov_b64 exec, 1
        v_mov_b32 v2, 1
        s_lshl_b32 {s(sT0)}, {s(sX)}, 5
        v_mov_b32 v3, {s(sT0)}
        buffer_atomic_add v2, v3, {DBGS}, 0 offen sc0
        s_mov_b64 exec, -1
        L_notick:
        v_lshrrev_b32 v4, 5, v0
        s_lshl_b32 {s(sT0)}, s2, 3
        v_add_u32 v4, {s(sT0)}, v4
        v_mul_u32_u24 v4, 1280, v4
        v_and_b32 v5, 31, v0
        v_lshl_add_u32 v6, v5, 3, v4
        v_lshl_add_u32 v5, v5, 4, v4
        buffer_load_dwordx4 v[8:11], v5, {s(S_A,4)}, 0 offen
        buffer_load_dwordx4 v[12:15], v5, {s(S_A,4)}, 0 offen offset:512
        buffer_load_dwordx2 v[16:17], v6, {s(S_A,4)}, 0 offen offset:1024
        s_cmp_lg_u32 {s(sW)}, 0
        s_cbranch_scc1 L_notick2
        v_mov_b32 v3, 0
        s_mov_b64 exec, 1
        ds_write_b32 v3, v2
        s_mov_b64 exec, -1
        L_notick2:""")
        self.barrier()
        k(f"""v_mov_b32 v3, 0
        ds_read_b32 v2, v3
        v_readfirstlane_b32 {s(sT)}, v2""")
        self.barrier()
        self.layernorm(8, 20, 40)
        k(f"""s_mov_b32 {s(sT0)}, {HA}
        buffer_store_dwordx4 v[8:11], v5, {WS}, {s(sT0)} offen sc1
        buffer_store_dwordx4 v[12:15], v5, {WS}, {s(sT0)} offen offset:512 sc1
        buffer_store_dwordx2 v[16:17], v6, {WS}, {s(sT0)} offen offset:1024 sc1
        s_lshr_b32 {s(sL)}, {s(sX)}, 2
        s_and_b32 {s(sHG)}, {s(sX)}, 3
        s_lshl_b32 {s(sFLAG)}, {s(sX)}, 5
        s_add_u32 {s(sFLAG)}, {s(sFLAG)}, {s(sT)}
        s_lshl_b32 {s(sFLAG)}, {s(sFLAG)}, 5
        s_add_u32 {s(sFLAG)}, {s(sFLAG)}, {s(sW)}
        s_lshl_b32 {s(sFLAG)}, {s(sFLAG)}, 2
        s_add_u32 {s(sFLAG)}, {s(sFLAG)}, {FLAGS}
        s_mov_b32 {s(sS)}, 0
        s_cmp_lt_u32 {s(sT)}, 24
        s_cbranch_scc1 L_roleC
        s_cmp_lt_u32 {s(sT)}, 28
        s_cbranch_scc1 L_roleT
        s_cmp_lt_u32 {s(sT)}, 30
        s_cbranch_scc1 L_roleB
        s_cmp_lt_u32 {s(sT)}, 32
        s_cbranch_scc1 L_roleR
        s_mov_b32 {s(sT3)}, 2
        L_fail:
        s_mov_b64 exec, 1
        s_lshl_b32 {s(sT3)}, {s(sT3)}, 8
        s_add_u32 {s(sT3)}, {s(sT3)}, {s(sT)}
        s_lshl_b32 {s(sT3)}, {s(sT3)}, 8
        s_add_u32 {s(sT3)}, {s(sT3)}, {s(sX)}
        s_lshl_b32 {s(sT3)}, {s(sT3)}, 8
        s_add_u32 {s(sT3)}, {s(sT3)}, {s(sS)}
        v_mov_b32 v2, {s(sT3)}
        v_mov_b32 v3, 24
        buffer_store_dword v2, v3, {DBGS}, 0 offen
        L_end:
        s_endpgm""")

    def role_gate(self, r):
        k = self.k
        if r not in self.o.roles:
            self.arrive()
            k("s_endpgm")
            return False
        if self.o.layers == 1:
            go = self.lab('go')
            k(f"s_cmp_eq_u32 {s(sL)}, 0\ns_cbranch_scc1 {go}")
            self.arrive()
            k(f"s_endpgm\n{go}:")
        return True

    def role_C(self):
        k = self.k
        k("L_roleC:")
        if not self.role_gate('C'):
            return
        MEM, PX, WR, XT, SP = 0, 12288, 16384, 20480, 61440
        V = Alloc(4, 256)
        S = Alloc(S_FREE, 102)
        vL = 1
        WOV = V(80, 4)
        (vXsrc, vXr0, vXr1, vMr, vT16, vT8, vL16, vL4, vL8, vSPw, vSM4, vSM1, vSX4, vSX1, vPw8, vPw2, vO2, vO2l,
         vAG, vOX, vFl, vM0, vM1) = (V() for _ in range(23))
        FB = V(24, 4)
        XA = V(24, 4)
        QX, KX, VA, VB = V(4, 4), V(4, 4), V(4, 4), V(4, 4)
        SENT, ONES = V(4, 4), V(4, 4)
        A, B = V(24, 4), V(24, 4)
        SUMM, SUMX = V(6, 2), V(6, 2)
        OXP, X3O = V(4, 4), V(4, 4)
        sC, sNEG, sSLOT, sXM0, sH, sOXB, sCU1, sCU2, sA0, sA1, sA2, sA3, sDUTY = (S() for _ in range(13))
        sMK = S(8, 2)
        self.sST = 32

        def WQ(ks): return a(4 * ks, 4)
        def WK(ks): return a(80 + 4 * ks, 4)
        def WV(ks): return a(160 + 4 * ks, 4)
        def WO(i, c=4, o=0): return a(240 + 4 * i + o, c) if i < 4 else v(WOV + 4 * (i - 4) + o, c)

        srd(k, S_A, P_WQ, 640 * 12288)
        srd(k, S_B, P_WK, 640 * 12288)
        srd(k, S_C, P_WV, 640 * 12288)
        srd(k, S_D, P_WO, 6144 * 1280)
        srd(k, S_E, P_MEM0, 10240)
        t0, t1, t2, t3, t4, t5 = A, A + 1, A + 2, A + 3, A + 4, A + 5
        k(f"""v_and_b32 {v(vL)}, 63, v0
        s_mul_i32 {s(sT0)}, {s(sHG)}, 3072
        s_lshl_b32 {s(sT1)}, {s(sT)}, 7
        s_add_u32 {s(sT0)}, {s(sT0)}, {s(sT1)}
        s_mul_i32 {s(sT1)}, {s(sW)}, {8*12288}
        s_add_u32 {s(sT0)}, {s(sT0)}, {s(sT1)}
        v_lshrrev_b32 {v(t0)}, 3, {v(vL)}
        v_mul_u32_u24 {v(t0)}, 12288, {v(t0)}
        v_and_b32 {v(t1)}, 7, {v(vL)}
        v_lshl_add_u32 {v(t0)}, {v(t1)}, 4, {v(t0)}
        v_add_u32 {v(t0)}, {s(sT0)}, {v(t0)}
        s_lshl_b32 {s(sA0)}, {s(sW)}, 10""")

        def stage_w(srdn, buf):
            lp = self.lab('stg')
            k(f"""s_mov_b32 {s(sT1)}, 0
            s_add_u32 m0, {s(sA0)}, {buf}
            {lp}:
            buffer_load_dwordx4 {v(t0)}, {s(srdn,4)}, {s(sT1)} offen lds
            s_add_u32 m0, m0, 4096
            s_add_u32 {s(sT1)}, {s(sT1)}, {32*12288}
            s_cmp_lt_u32 {s(sT1)}, {640*12288}
            s_cbranch_scc1 {lp}""")
        stage_w(S_A, 0)
        stage_w(S_B, 81920)
        j_, hf, g_, t_, u0, u1 = B, B + 1, B + 2, B + 3, B + 4, B + 5
        k(f"""v_and_b32 {v(j_)}, 7, {v(vL)}
        v_bfe_u32 {v(hf)}, {v(vL)}, 3, 1
        v_lshrrev_b32 {v(g_)}, 4, {v(vL)}
        v_and_b32 {v(t_)}, 15, {v(vL)}
        v_lshlrev_b32 {v(vT16)}, 4, v0
        v_lshlrev_b32 {v(vT8)}, 3, v0
        v_add_u32 {v(vT8)}, 8192, {v(vT8)}
        v_lshlrev_b32 {v(vL16)}, 4, {v(vL)}
        v_lshlrev_b32 {v(vL8)}, 3, {v(vL)}
        v_lshlrev_b32 {v(vL4)}, 2, {v(vL)}
        v_lshrrev_b32 {v(u0)}, 3, v0
        v_mul_u32_u24 {v(vXsrc)}, 1280, {v(u0)}
        v_and_b32 {v(u0)}, 7, {v(u0)}
        v_xor_b32 {v(u0)}, {v(u0)}, {v(j_)}
        v_lshl_add_u32 {v(vXsrc)}, {v(u0)}, 4, {v(vXsrc)}
        v_mul_u32_u24 {v(vXr0)}, 10240, {v(hf)}
        v_lshl_add_u32 {v(vXr0)}, {v(j_)}, 7, {v(vXr0)}
        v_xor_b32 {v(u0)}, {v(g_)}, {v(j_)}
        v_lshl_add_u32 {v(vXr0)}, {v(u0)}, 4, {v(vXr0)}
        v_xor_b32 {v(vXr1)}, 64, {v(vXr0)}
        v_lshlrev_b32 {v(vMr)}, 7, {v(g_)}
        v_lshl_add_u32 {v(vMr)}, {v(j_)}, 4, {v(vMr)}
        v_lshl_add_u32 {v(vAG)}, {v(hf)}, 3, {v(vMr)}
        s_lshl_b32 {s(sT0)}, {s(sW)}, 13
        s_add_u32 {s(sT0)}, {s(sT0)}, {SP}
        v_add_u32 {v(vSPw)}, {s(sT0)}, {v(vL16)}
        v_lshl_add_u32 {v(vSM4)}, {v(hf)}, 10, {v(vL16)}
        v_add_u32 {v(vSM4)}, {SP+1024}, {v(vSM4)}
        v_lshrrev_b32 {v(u0)}, 1, {v(g_)}
        v_lshl_add_u32 {v(u0)}, {v(u0)}, 1, {v(hf)}
        v_lshl_add_u32 {v(vSM1)}, {v(u0)}, 2, {v(vL16)}
        v_add_u32 {v(vSM1)}, {SP}, {v(vSM1)}
        s_and_b32 {s(sT0)}, {s(sW)}, 1
        s_lshl_b32 {s(sT0)}, {s(sT0)}, 3
        s_lshr_b32 {s(sT1)}, {s(sW)}, 1
        v_lshl_add_u32 {v(u1)}, {v(g_)}, 4, {v(j_)}
        v_add_u32 {v(u1)}, {s(sT0)}, {v(u1)}
        v_add_u32 {v(vSX4)}, 1, {v(hf)}
        v_mul_u32_u24 {v(vSX4)}, {s(sT1)}, {v(vSX4)}
        v_lshlrev_b32 {v(vSX4)}, 10, {v(vSX4)}
        v_lshl_add_u32 {v(vSX4)}, {v(u1)}, 4, {v(vSX4)}
        v_add_u32 {v(vSX4)}, {SP+5*1024}, {v(vSX4)}
        s_lshl_b32 {s(sT2)}, {s(sT1)}, 10
        s_add_u32 {s(sT2)}, {s(sT2)}, {SP+3*1024}
        v_lshlrev_b32 {v(vSX1)}, 4, {v(u1)}
        v_lshl_add_u32 {v(vSX1)}, {v(u0)}, 2, {v(vSX1)}
        v_add_u32 {v(vSX1)}, {s(sT2)}, {v(vSX1)}
        s_mul_i32 {s(sT2)}, {s(sT1)}, 1536
        s_add_u32 {s(sT2)}, {s(sT2)}, {PX}
        v_lshlrev_b32 {v(vPw2)}, 4, {v(u1)}
        v_lshlrev_b32 {v(vPw8)}, 3, {v(u1)}
        v_add_u32 {v(vPw8)}, 1024, {v(vPw8)}
        v_cmp_eq_u32 vcc, 0, {v(hf)}
        v_cndmask_b32 {v(vPw8)}, {v(vPw8)}, {v(vPw2)}, vcc
        v_add_u32 {v(vPw8)}, {s(sT2)}, {v(vPw8)}
        v_lshl_add_u32 {v(vPw2)}, {v(u0)}, 1, {v(vPw2)}
        v_add_u32 {v(vPw2)}, 8, {v(vPw2)}
        v_add_u32 {v(vPw2)}, {s(sT2)}, {v(vPw2)}
        v_mov_b32 {v(u1)}, 0xffff
        v_mov_b32 {v(vM0)}, 0xffff0000
        v_cndmask_b32 {v(u1)}, {v(vM0)}, {v(u1)}, vcc
        s_lshl_b32 {s(sT2)}, {s(sW)}, 8
        v_lshlrev_b32 {v(vO2)}, 5, {v(j_)}
        v_lshl_add_u32 {v(vO2)}, {v(g_)}, 3, {v(vO2)}
        v_add_u32 {v(vO2)}, {s(sT2)}, {v(vO2)}
        v_mov_b32 {v(vM1)}, {OOB:#x}
        v_cndmask_b32 {v(vO2)}, {v(vM1)}, {v(vO2)}, vcc
        v_cmp_gt_u32 vcc, 2, {v(g_)}
        v_cndmask_b32 {v(vM0)}, 0, {v(u1)}, vcc
        v_xor_b32 {v(vM1)}, {v(vM0)}, {v(u1)}
        v_lshrrev_b32 {v(u0)}, 1, {v(g_)}
        v_lshl_add_u32 {v(u0)}, {v(hf)}, 1, {v(u0)}
        v_lshlrev_b32 {v(vO2l)}, 8, {v(u0)}
        v_lshl_add_u32 {v(vO2l)}, {v(j_)}, 5, {v(vO2l)}
        v_and_b32 {v(u0)}, 1, {v(g_)}
        v_lshl_add_u32 {v(vO2l)}, {v(u0)}, 4, {v(vO2l)}
        s_mul_i32 {s(sT2)}, {s(sW)}, 6144
        s_add_u32 {s(sT2)}, {s(sT2)}, {R_X2}
        v_add_u32 {v(vO2l)}, {s(sT2)}, {v(vO2l)}
        ; o_x publish
        v_lshrrev_b32 {v(u1)}, 5, {v(vL)}
        v_mul_u32_u24 {v(vOX)}, 24576, {v(u1)}
        v_and_b32 {v(u1)}, 31, {v(vL)}
        v_lshl_add_u32 {v(vOX)}, {v(u1)}, 4, {v(vOX)}
        s_lshl_b32 {s(sT2)}, {s(sW)}, 9
        v_add_u32 {v(vOX)}, {s(sT2)}, {v(vOX)}
        s_cmp_ge_u32 {s(sT)}, 12
        s_cselect_b32 {s(sT2)}, {49152-12*2048}, 0
        s_lshl_b32 {s(sOXB)}, {s(sT)}, 11
        s_add_u32 {s(sOXB)}, {s(sOXB)}, {s(sT2)}
        s_mul_i32 {s(sT2)}, {s(sHG)}, {2*49152}
        s_add_u32 {s(sOXB)}, {s(sOXB)}, {s(sT2)}
        s_mul_i32 {s(sT2)}, {s(sL)}, {64*8*49152}
        s_add_u32 {s(sOXB)}, {s(sOXB)}, {s(sT2)}
        s_add_u32 {s(sOXB)}, {s(sOXB)}, {OX}
        v_and_b32 {v(vFl)}, 3, {v(vL)}
        v_lshlrev_b32 {v(vFl)}, 12, {v(vFl)}
        v_add_u32 {v(vFl)}, {FLAGS+31*128}, {v(vFl)}
        v_lshlrev_b32 {v(u0)}, 2, {v(g_)}
        v_lshl_add_u32 {v(u0)}, {v(hf)}, 4, {v(u0)}
        s_lshl_b32 {s(sT2)}, {s(sW)}, 3
        v_add_u32 {v(u1)}, {s(sT2)}, {v(j_)}""")
        for r in range(4):
            k(f"v_cmp_gt_u32 {s(sMK+2*r,2)}, {v(u0)}, {v(u1)}\nv_add_u32 {v(u0)}, 1, {v(u0)}")
        for r in range(4):
            k(f"v_mov_b32 {v(SENT+r)}, -1\nv_mov_b32 {v(ONES+r)}, 0x3f803f80")
        scale = 192 ** -0.5
        k(f"""s_mov_b32 {s(sC)}, {f2u(scale*math.log2(math.e))}
        s_mov_b32 {s(sNEG)}, {f2u(-1e9/scale)}
        s_mul_i32 {s(sXM0)}, {s(sW)}, 10240
        s_mul_i32 {s(sH)}, {s(sL)}, {XSZ}
        s_add_u32 {s(sH)}, {s(sH)}, {HA}
        s_mul_i32 {s(sT0)}, {s(sT)}, 43
        s_lshr_b32 {s(sT0)}, {s(sT0)}, 7
        s_mul_i32 {s(sT0)}, {s(sT0)}, 3
        s_add_u32 {s(sT1)}, {s(sT0)}, 3
        s_add_u32 {s(sCU1)}, {s(sT)}, 1
        s_cmp_eq_u32 {s(sCU1)}, {s(sT1)}
        s_cselect_b32 {s(sCU1)}, {s(sT0)}, {s(sCU1)}
        s_add_u32 {s(sCU2)}, {s(sCU1)}, 1
        s_cmp_eq_u32 {s(sCU2)}, {s(sT1)}
        s_cselect_b32 {s(sCU2)}, {s(sT0)}, {s(sCU2)}
        s_cmp_lt_u32 {s(sT)}, 20
        s_cselect_b32 {s(sDUTY)}, {s(sW)}, 0""")

        def a_x1m(dst, base, cu):
            return [f"s_mul_i32 {s(dst)}, {s(cu)}, 1280", f"s_add_u32 {s(dst)}, {s(dst)}, {s(base)}"]

        def a_x1x(dst, base, cu):
            return [f"s_lshl_b32 {s(dst)}, {s(cu)}, 2", f"s_add_u32 {s(dst)}, {s(dst)}, {s(sW)}", f"s_mul_i32 {s(dst)}, {s(dst)}, 1280",
                    f"s_add_u32 {s(dst)}, {s(dst)}, {s(base)}", f"s_add_u32 {s(dst)}, {s(dst)}, {R_X1X}"]

        def a_lin(dst, base, shift, off):
            return [f"s_lshl_b32 {s(dst)}, {s(sT)}, {shift}", f"s_add_u32 {s(dst)}, {s(dst)}, {s(base)}", f"s_add_u32 {s(dst)}, {s(dst)}, {off}"]

        def st5(d, so):
            return [f"buffer_store_dwordx4 {v(d,4)}, {v(vL16)}, {WS}, {s(so)} offen",
                    f"buffer_store_dword {v(d+4 if d != SENT else d)}, {v(vL4)}, {WS}, {s(so)} offen offset:1024"]

        def ld5(d, so):
            return [f"buffer_load_dwordx4 {v(d,4)}, {v(vL16)}, {WS}, {s(so)} offen sc1",
                    f"buffer_load_dword {v(d+4)}, {v(vL4)}, {WS}, {s(so)} offen offset:1024 sc1"]

        def resets(base):
            l0, l1 = self.lab('rs'), self.lab('rs')
            k.many(a_x1x(sT0, base, sT) + st5(SENT, sT0) + a_lin(sT1, base, 10, R_X2))
            k(f"""buffer_store_dwordx2 {v(SENT,2)}, {v(vO2)}, {WS}, {s(sT1)} offen
            s_cmp_lg_u32 {s(sW)}, 0
            s_cbranch_scc1 {l0}""")
            k.many(a_x1m(sT0, base, sT) + st5(SENT, sT0))
            k(f"{l0}:\ns_cmp_lg_u32 {s(sDUTY)}, 3\ns_cbranch_scc1 {l1}")
            k.many(a_lin(sT0, base, 9, R_AG) + a_lin(sT1, base, 10, R_X3))
            k(f"""buffer_store_dwordx2 {v(SENT,2)}, {v(vAG)}, {WS}, {s(sT0)} offen
            buffer_store_dwordx4 {v(SENT,4)}, {v(vL16)}, {WS}, {s(sT1)} offen sc1
            {l1}:""")

        lp = self.lab('rinit')
        k(f"""s_lshl_b32 {s(sSLOT)}, {s(sX)}, 20
        {lp}:""")
        resets(sSLOT)
        k(f"""s_add_u32 {s(sSLOT)}, {s(sSLOT)}, {SLOT}
        s_and_b32 {s(sT0)}, {s(sSLOT)}, {3*SLOT}
        s_cbranch_scc1 {lp}""")
        self.arrive()
        k(f"""v_lshrrev_b32 {v(t1)}, 4, {v(vL)}
        v_lshlrev_b32 {v(t1)}, 3, {v(t1)}
        v_bfe_u32 {v(t2)}, {v(vL)}, 2, 2
        v_add_u32 {v(t5)}, {v(t1)}, {v(t2)}
        v_lshlrev_b32 {v(t1)}, 7, {v(t5)}
        v_and_b32 {v(t4)}, 3, {v(vL)}
        v_lshl_add_u32 {v(t1)}, {v(t4)}, 3, {v(t1)}
        s_lshl_b32 {s(sT0)}, {s(sW)}, 5
        v_add_u32 {v(t1)}, {s(sT0)}, {v(t1)}
        v_add_u32 {v(t2)}, 40960, {v(t1)}""")

        def read_w(base_a):
            for ks in range(20):
                for h in range(2):
                    k(f"ds_read_b64_tr_b16 {a(base_a+4*ks+2*h,2)}, {v(t1 if ks < 10 else t2)} offset:{(ks%10)*4096+h*512}")
        read_w(0)
        self.barrier()
        stage_w(S_C, 0)
        k(f"v_add_u32 {v(t1)}, 81920, {v(t1)}\nv_add_u32 {v(t2)}, 81920, {v(t2)}")
        read_w(80)
        self.barrier()
        nowo = self.lab('nowo')
        k(f"""s_cmp_ge_u32 {s(sT)}, 20
        s_cbranch_scc1 {nowo}
        s_lshl_b32 {s(sT0)}, {s(sHG)}, 2
        s_add_u32 {s(sT0)}, {s(sT0)}, {s(sW)}
        s_mul_i32 {s(sT0)}, {s(sT0)}, {384*1280}
        s_lshl_b32 {s(sT1)}, {s(sT)}, 6
        s_add_u32 {s(sT0)}, {s(sT0)}, {s(sT1)}
        v_lshrrev_b32 {v(t3)}, 2, {v(vL)}
        v_mul_u32_u24 {v(t3)}, 1280, {v(t3)}
        v_lshl_add_u32 {v(t3)}, {v(t4)}, 4, {v(t3)}
        v_add_u32 {v(t3)}, {s(sT0)}, {v(t3)}
        s_mul_i32 {s(sA1)}, {s(sW)}, 20480
        s_add_u32 {s(sA1)}, {s(sA1)}, 81920
        v_lshlrev_b32 {v(t5)}, 6, {v(t5)}
        v_lshl_add_u32 {v(t5)}, {v(t4)}, 4, {v(t5)}
        v_add_u32 {v(t5)}, {s(sA1)}, {v(t5)}""")

        def stage_wo(row0, nins):
            lp = self.lab('stgo')
            k(f"""s_mov_b32 {s(sT1)}, {row0*1280}
            s_mov_b32 m0, {s(sA1)}
            {lp}:
            buffer_load_dwordx4 {v(t3)}, {s(S_D,4)}, {s(sT1)} offen lds
            s_add_u32 m0, m0, 1024
            s_add_u32 {s(sT1)}, {s(sT1)}, {16*1280}
            s_cmp_lt_u32 {s(sT1)}, {(row0+16*nins)*1280}
            s_cbranch_scc1 {lp}""")

        def read_wo(ks0, ks1):
            for ks in range(ks0, ks1):
                for t in range(2):
                    for h in range(2):
                        k(f"ds_read_b64_tr_b16 {WO(2*ks+t,2,2*h)}, {v(t5)} offset:{(ks-ks0)*2048+h*256+t*8}")
        stage_wo(0, 20)
        k("s_waitcnt vmcnt(0)")
        read_wo(0, 10)
        k("s_waitcnt lgkmcnt(0)")
        stage_wo(320, 4)
        k("s_waitcnt vmcnt(0)")
        read_wo(10, 12)
        k(f"{nowo}:\ns_waitcnt vmcnt(0)")
        self.barrier()
        k(f"v_subrev_u32 {v(t1)}, 81920, {v(t1)}\nv_subrev_u32 {v(t2)}, 81920, {v(t2)}")
        read_w(160)
        self.wait_grid()
        self.barrier()

        def x_dma():
            out = []
            for cb in range(10):
                out.append([f"s_add_u32 m0, {s(sXM0)}, {XT+cb*896}",
                            f"buffer_load_dwordx4 {v(vXsrc)}, {WS}, {s(sH)} offen offset:{cb*128} sc1 lds"])
            return out

        def xread(ks):
            b = FB + (ks % 3) * 8
            return [f"ds_read_b128 {v(b+4*mt,4)}, {v(vXr1 if ks & 1 else vXr0)} offset:{XT+mt*20480+(ks>>1)*1024}" for mt in range(2)]

        def xstep(ks):
            b = FB + (ks % 3) * 8
            out = []
            for mt in range(2):
                f = v(b + 4 * mt, 4)
                for i, (x, y) in enumerate(((WQ(ks), f), (WK(ks), f), (f, WV(ks)))):
                    acc = v(XA + 8 * i + 4 * mt, 4)
                    out.append(f"v_mfma_f32_16x16x32_bf16 {acc}, {x}, {y}, {acc if ks else 0}")
            if ks + 2 < 20:
                rd = xread(ks + 2)
                out = out[:1] + rd[:1] + out[1:2] + rd[1:] + out[2:]
            return out

        def x_finish():
            for mt in range(2):
                for i, d in enumerate((QX + 2 * mt, KX + 2 * mt, (VA, VB)[mt])):
                    acc = XA + 8 * i + 4 * mt
                    k(f"v_cvt_pk_bf16_f32 {v(d)}, {v(acc)}, {v(acc+1)}\nv_cvt_pk_bf16_f32 {v(d+1)}, {v(acc+2)}, {v(acc+3)}")
            for i, (kt, qt) in enumerate(((0, 0), (0, 1), (1, 1))):
                k(f"v_mfma_f32_16x16x16_bf16 {v(XA+4*i,4)}, {v(KX+2*kt,2)}, {v(QX+2*qt,2)}, 0")
            for i in range(3):
                k(f"ds_write_b128 {v(vSPw)}, {v(XA+4*i,4)} offset:{(5+i)*1024}")

        def mread(ks):
            return f"ds_read_b128 {v(FB+(ks%6)*4,4)}, {v(vMr)} offset:{MEM+ks*512}"

        def reduce5(dst, tmp, a4, a1):
            rd, ad = [], []
            for w in range(4):
                rd.append(f"ds_read_b128 {v(tmp+4*w,4)}, {v(a4)} offset:{w*8192}")
                rd.append(f"ds_read_b32 {v(tmp+16+w)}, {v(a1)} offset:{w*8192}")
            for r in range(5):
                x = [tmp + 4 * w + r if r < 4 else tmp + 16 + w for w in range(4)]
                ad.append(f"v_add_f32 {v(x[0])}, {v(x[0])}, {v(x[1])}")
            for r in range(5):
                x = [tmp + 4 * w + r if r < 4 else tmp + 16 + w for w in range(4)]
                ad.append(f"v_add_f32 {v(x[2])}, {v(x[2])}, {v(x[3])}")
                ad.append(f"v_add_f32 {v(dst+r)}, {v(x[0])}, {v(x[2])}")
            return rd, ad

        def softmax5(x, r1, r2, t, masked):
            for r in range(5):
                k(f"v_add_f32 {v(r1+r)}, {v(r1+r)}, {v(r2+r)}")
            for r in range(5):
                k(f"v_add_f32 {v(x+r)}, {v(x+r)}, {v(r1+r)}")
            if masked:
                k(f"v_mov_b32 {v(t)}, {s(sNEG)}")
                for r in range(4):
                    k(f"v_cndmask_b32 {v(x+r)}, {v(x+r)}, {v(t)}, {s(sMK+2*r,2)}")
            k(f"""v_max3_f32 {v(t)}, {v(x)}, {v(x+1)}, {v(x+2)}
            v_max3_f32 {v(t)}, {v(t)}, {v(x+3)}, {v(x+4)}
            v_max_f32_dpp {v(t)}, {v(t)}, {v(t)} row_ror:8 row_mask:0xf bank_mask:0xf
            v_mov_b32 {v(t+1)}, {v(t)}
            v_permlane16_swap_b32 {v(t)}, {v(t+1)}
            v_max_f32 {v(t)}, {v(t)}, {v(t+1)}
            v_mov_b32 {v(t+1)}, {v(t)}
            v_permlane32_swap_b32 {v(t)}, {v(t+1)}
            v_max_f32 {v(t)}, {v(t)}, {v(t+1)}
            v_mul_f32 {v(t)}, {s(sC)}, {v(t)}""")
            for r in range(5):
                k(f"v_fma_f32 {v(x+r)}, {v(x+r)}, {s(sC)}, -{v(t)}")
            for r in range(5):
                k(f"v_exp_f32 {v(x+r)}, {v(x+r)}")

        fl_ld = f"buffer_load_dwordx4 {v(B+20,4)}, {v(vFl)}, {WS}, 0 offen sc1"

        def wait_h(want_add):
            skip = self.lab('nofl')
            k(f"""s_cmp_eq_u32 {s(sL)}, 0
            s_cbranch_scc1 {skip}
            s_add_u32 {s(sT0)}, {s(sS)}, {want_add}
            s_min_u32 {s(sT0)}, {s(sT0)}, 64""")
            self.check_flags(B + 20, B + 19, sT0, [fl_ld], 10)
            k(f"{skip}:")

        k(f"""v_mov_b32 {v(A)}, 0
        v_mov_b32 {v(A+1)}, 0
        v_mov_b32 {v(A+2)}, 0
        v_mov_b32 {v(A+3)}, 0
        ds_write_b128 {v(vT16)}, {v(A,4)} offset:{PX}""")
        k(fl_ld)
        wait_h(1)
        for d in x_dma():
            k.many(d)
        k(f"""v_and_b32 {v(A+5)}, 7, v0
        v_mul_u32_u24 {v(A+5)}, 1280, {v(A+5)}
        v_lshrrev_b32 {v(A+6)}, 3, v0
        v_lshl_add_u32 {v(A+5)}, {v(A+6)}, 4, {v(A+5)}""")
        for i in range(3):
            k(f"buffer_load_dwordx4 {v(A+8+4*i,4)}, {v(A+5)}, {s(S_E,4)}, 0 offen offset:{512*i}")
        for i in range(3):
            k(f"ds_write_b128 {v(vT16)}, {v(A+8+4*i,4)} offset:{MEM+4096*i}")
        k(f"s_add_u32 {s(sH)}, {s(sH)}, {TILE}")
        k(fl_ld)
        self.barrier()
        k.many(xread(0) + xread(1))
        for ks in range(20):
            k.many(xstep(ks))
        x_finish()
        k(f"s_lshl_b32 {s(sSLOT)}, {s(sX)}, 20")

        k("L_Cstep:")
        self.barrier()
        self.stamp(0)
        k.many([mread(ks) for ks in range(5)])
        wait_h(2)
        AQ, AK, QM, KM = A + 12, A + 16, A + 20, A + 22
        main = []
        for ks in range(20):
            f = v(FB + (ks % 6) * 4, 4)
            g = [f"v_mfma_f32_16x16x32_bf16 {v(AQ,4)}, {WQ(ks)}, {f}, {v(AQ,4) if ks else 0}"]
            if ks + 5 < 20:
                g.append(mread(ks + 5))
            g.append(f"v_mfma_f32_16x16x32_bf16 {v(AK,4)}, {WK(ks)}, {f}, {v(AK,4) if ks else 0}")
            main.append(g)
        dma = x_dma()
        pre = a_x1m(sA0, sSLOT, sT) + a_x1m(sA1, sSLOT, sCU1) + a_x1m(sA2, sSLOT, sCU2) + a_x1x(sA3, sSLOT, sT)
        for ks in range(20):
            k.many(main[ks])
            if ks % 2 == 0:
                k.many(dma[ks // 2])
            elif pre:
                k.many(pre[:2])
                pre = pre[2:]
        k(f"s_add_u32 {s(sH)}, {s(sH)}, {TILE}")
        self.stamp(1)
        k(f"""v_cvt_pk_bf16_f32 {v(QM)}, {v(AQ)}, {v(AQ+1)}
        v_cvt_pk_bf16_f32 {v(QM+1)}, {v(AQ+2)}, {v(AQ+3)}
        v_cvt_pk_bf16_f32 {v(KM)}, {v(AK)}, {v(AK+1)}
        v_cvt_pk_bf16_f32 {v(KM+1)}, {v(AK+2)}, {v(AK+3)}
        v_mfma_f32_16x16x16_bf16 {v(B+4,4)}, {v(KX,2)}, {v(QM,2)}, 0
        v_mfma_f32_16x16x16_bf16 {v(B+8,4)}, {v(KX+2,2)}, {v(QM,2)}, 0
        v_mfma_f32_16x16x16_bf16 {v(B,4)}, {v(KM,2)}, {v(QM,2)}, 0
        v_mfma_f32_16x16x16_bf16 {v(B+12,4)}, {v(KM,2)}, {v(QX,2)}, 0
        v_mfma_f32_16x16x16_bf16 {v(B+16,4)}, {v(KM,2)}, {v(QX+2,2)}, 0""")
        for i in (1, 2, 0, 3, 4):
            k(f"ds_write_b128 {v(vSPw)}, {v(B+4*i,4)} offset:{i*1024}")
        self.barrier()
        self.stamp(2)
        rd, ad = reduce5(SUMM, A, vSM4, vSM1)
        k.many(rd)
        k.many([mread(ks) for ks in range(5)])
        k.many(ad)
        skip = self.lab('pubm')
        k(f"s_cmp_lg_u32 {s(sW)}, 0\ns_cbranch_scc1 {skip}")
        k.many(st5(SUMM, sA0))
        k(f"{skip}:")
        self.stamp(3)
        AV = B + 20
        rd, ad = reduce5(SUMX, B, vSX4, vSX1)
        main = []
        for ks in range(20):
            main.append(f"v_mfma_f32_16x16x32_bf16 {v(AV,4)}, {v(FB+(ks%6)*4,4)}, {WV(ks)}, {v(AV,4) if ks else 0}")
            if ks + 5 < 20:
                main.append(mread(ks + 5))
        x1m_ld = ld5(A, sA1) + ld5(A + 6, sA2)
        k.many(rd)
        k.many(weave(main, ad + [x1m_ld] + [st5(SUMX, sA3)], start=8))
        k.many(a_x1x(sA0, sSLOT, sCU1) + a_x1x(sA3, sSLOT, sCU2))
        for d in (VA + 2, VB + 2):
            k(f"v_cvt_pk_bf16_f32 {v(d)}, {v(AV)}, {v(AV+1)}\nv_cvt_pk_bf16_f32 {v(d+1)}, {v(AV+2)}, {v(AV+3)}")
        self.stamp(4)
        self.check_sentinel([A + i for i in (0, 1, 2, 3, 4, 6, 7, 8, 9, 10)], A + 12, x1m_ld, 11)
        self.stamp(5)
        x1x_ld = ld5(B + 12, sA0) + ld5(B + 18, sA3)
        k.many(x1x_ld)
        k.many(a_lin(sA1, sSLOT, 10, R_X2))
        softmax5(SUMM, A, A + 6, A + 12, False)
        PM = A + 16
        k(f"""v_cvt_pk_bf16_f32 {v(PM+3)}, {v(SUMM+4)}, {v(SUMM+4)}
        v_cvt_pk_bf16_f32 {v(PM)}, {v(SUMM)}, {v(SUMM+1)}
        v_cvt_pk_bf16_f32 {v(PM+1)}, {v(SUMM+2)}, {v(SUMM+3)}
        v_and_b32 {v(PM+2)}, {v(vM0)}, {v(PM+3)}
        v_and_b32 {v(PM+3)}, {v(vM1)}, {v(PM+3)}
        v_mfma_f32_16x16x32_bf16 {v(B+8,4)}, {v(ONES,4)}, {v(PM,4)}, 0
        v_mfma_f32_16x16x32_bf16 {v(B,4)}, {v(VA,4)}, {v(PM,4)}, 0
        v_mfma_f32_16x16x32_bf16 {v(B+4,4)}, {v(VB,4)}, {v(PM,4)}, 0
        s_add_u32 {s(sA2)}, {s(sSLOT)}, 4096
        v_add_f32_dpp {v(B+8)}, {v(B+8)}, {v(B+8)} row_ror:8 row_mask:0xf bank_mask:0xf
        v_rcp_f32 {v(B+8)}, {v(B+8)}""")
        for r in range(4):
            k(f"v_add_f32_dpp {v(B+r)}, {v(B+4+r)}, {v(B+r)} row_ror:8 row_mask:0xf bank_mask:0xf")
        for r in range(4):
            k(f"v_mul_f32 {v(B+r)}, {v(B+r)}, {v(B+8)}")
        k(f"""v_cvt_pk_bf16_f32 {v(B)}, {v(B)}, {v(B+1)}
        v_cvt_pk_bf16_f32 {v(B+1)}, {v(B+2)}, {v(B+3)}
        v_min_u32 {v(B)}, -2, {v(B)}
        v_min_u32 {v(B+1)}, -2, {v(B+1)}
        buffer_store_dwordx2 {v(B,2)}, {v(vO2)}, {WS}, {s(sA1)} offen""")
        self.stamp(6)
        self.check_sentinel([B + 12 + i for i in (0, 1, 2, 3, 4, 6, 7, 8, 9, 10)], A + 12, x1x_ld, 12)
        softmax5(SUMX, B + 12, B + 18, A + 12, True)
        k(f"""v_cvt_pk_bf16_f32 {v(PM)}, {v(SUMX)}, {v(SUMX+1)}
        v_cvt_pk_bf16_f32 {v(PM+1)}, {v(SUMX+2)}, {v(SUMX+3)}
        v_cvt_pk_bf16_f32 {v(PM+2)}, {v(SUMX+4)}, {v(SUMX+4)}
        ds_write_b64 {v(vPw8)}, {v(PM,2)}
        ds_write_b16 {v(vPw2)}, {v(PM+2)}""")
        x2_ld = [f"buffer_load_dwordx4 {v(FB+4*u,4)}, {v(vO2l)}, {WS}, {s(sSLOT if u < 4 else sA2)} offen offset:{(u%4)*1024} sc1" for u in range(6)]
        k.many(x2_ld)
        self.barrier()
        self.stamp(7)
        k(f"""ds_read_b128 {v(A,4)}, {v(vL16)} offset:{PX}
        ds_read_b128 {v(A+4,4)}, {v(vL16)} offset:{PX+1536}
        ds_read_b64 {v(A+8,2)}, {v(vL8)} offset:{PX+1536+1024}
        v_mfma_f32_16x16x32_bf16 {v(B+8,4)}, {v(ONES,4)}, {v(A,4)}, 0
        v_mfma_f32_16x16x32_bf16 {v(B,4)}, {v(VA,4)}, {v(A,4)}, 0
        v_mfma_f32_16x16x32_bf16 {v(B+12,4)}, {v(ONES,4)}, {v(A+4,4)}, 0
        v_mfma_f32_16x16x32_bf16 {v(B+4,4)}, {v(VA,4)}, {v(A+4,4)}, 0
        v_mfma_f32_16x16x16_bf16 {v(B+12,4)}, {v(ONES,2)}, {v(A+8,2)}, {v(B+12,4)}
        v_mfma_f32_16x16x16_bf16 {v(B+4,4)}, {v(VB,2)}, {v(A+8,2)}, {v(B+4,4)}
        v_rcp_f32 {v(B+8)}, {v(B+8)}""")
        for r in range(4):
            k(f"v_mul_f32 {v(B+r)}, {v(B+r)}, {v(B+8)}")
        k(f"v_rcp_f32 {v(B+12)}, {v(B+12)}")
        k(f"v_cvt_pk_bf16_f32 {v(OXP)}, {v(B)}, {v(B+1)}\nv_cvt_pk_bf16_f32 {v(OXP+1)}, {v(B+2)}, {v(B+3)}")
        for r in range(4):
            k(f"v_mul_f32 {v(B+4+r)}, {v(B+4+r)}, {v(B+12)}")
        k(f"""v_cvt_pk_bf16_f32 {v(OXP+2)}, {v(B+4)}, {v(B+5)}
        v_cvt_pk_bf16_f32 {v(OXP+3)}, {v(B+6)}, {v(B+7)}
        v_permlane32_swap_b32 {v(OXP)}, {v(OXP+2)}
        v_permlane32_swap_b32 {v(OXP+1)}, {v(OXP+3)}""")
        ox_st = f"buffer_store_dwordx4 {v(OXP,4)}, {v(vOX)}, {WS}, {s(sOXB)} offen sc1"
        k(f"s_cmp_eq_u32 {s(sS)}, 63\ns_cbranch_scc1 L_Clast")
        self.ool.append(['L_Clast:', ox_st, 's_waitcnt vmcnt(0)'] + self.put_flag(A) + ['s_endpgm'])
        self.stamp(8)
        k(f"s_cmp_ge_u32 {s(sT)}, 20\ns_cbranch_scc1 L_CnoWo0")
        self.ool.append(['L_CnoWo0:', 's_waitcnt vmcnt(0)', 's_branch L_CnoWo'])
        self.check_sentinel(range(FB, FB + 24), A + 20, x2_ld, 13)
        self.stamp(9)
        for u in range(6):
            for half in range(2):
                for t in range(2):
                    acc = v(A + 8 * half + 4 * t, 4)
                    k(f"v_mfma_f32_16x16x32_bf16 {acc}, {WO(4*u+2*half+t)}, {v(FB+4*u,4)}, {acc if u else 0}")
        k.many(a_lin(sA0, sSLOT, 10, R_X3))
        for r in range(4):
            k(f"v_add_f32_dpp {v(A+16+r)}, {v(A+8+r)}, {v(A+r)} row_ror:8 row_mask:0xf bank_mask:0x3")
        for r in range(4):
            k(f"v_add_f32_dpp {v(A+16+r)}, {v(A+4+r)}, {v(A+12+r)} row_ror:8 row_mask:0xf bank_mask:0xc")
        k(f"ds_write_b128 {v(vT16)}, {v(A+16,4)} offset:{WR}")
        self.barrier()
        k(f"s_cmp_lg_u32 {s(sDUTY)}, 3\ns_cbranch_scc1 L_CnoWo")
        for w in range(4):
            k(f"ds_read_b128 {v(B+4*w,4)}, {v(vL16)} offset:{WR+w*1024}")
        for r in range(4):
            k(f"v_add_f32 {v(B+r)}, {v(B+r)}, {v(B+4+r)}")
        for r in range(4):
            k(f"v_add_f32 {v(B+8+r)}, {v(B+8+r)}, {v(B+12+r)}\nv_add_f32 {v(X3O+r)}, {v(B+r)}, {v(B+8+r)}")
        k(f"buffer_store_dwordx4 {v(X3O,4)}, {v(vL16)}, {WS}, {s(sA0)} offen sc1")
        k("L_CnoWo:")
        self.stamp(10)
        k.many(xread(0) + xread(1))
        k(ox_st)
        k(f"""s_add_u32 {s(sOXB)}, {s(sOXB)}, {8*49152}
        s_xor_b32 {s(sA1)}, {s(sSLOT)}, {2*SLOT}""")
        resets(sA1)
        K_X3I, K_FLAG, K_X3C, K_AGI = 2, 8, 11, 16
        x3_ld = [f"buffer_load_dwordx4 {v(B+4*i,4)}, {v(vL16)}, {WS}, {s(sA1+i)} offen sc1" for i in range(3)]
        ag_ld = [f"buffer_load_dwordx4 {v(A,4)}, {v(vT16)}, {WS}, {s(sA0)} offen sc1",
                 f"buffer_load_dwordx4 {v(A+4,4)}, {v(vT16)}, {WS}, {s(sA1)} offen sc1",
                 f"buffer_load_dwordx2 {v(A+8,2)}, {v(vT8)}, {WS}, {s(sA0)} offen sc1"]
        for ks in range(20):
            if ks == K_X3I:
                skip = self.lab('x3i')
                k(f"s_cmp_lg_u32 {s(sDUTY)}, 3\ns_cbranch_scc1 {skip}")
                for i in range(3):
                    k(f"s_xor_b32 {s(sA1+i)}, {s(sA0)}, {(i+1)*MB}")
                k.many(x3_ld)
                k(f"{skip}:")
            if ks == K_FLAG:
                skip = self.lab('flg')
                k(f"s_cmp_eq_u32 {s(sDUTY)}, 3\ns_cbranch_scc1 {skip}\ns_waitcnt vmcnt(0)")
                k.many(self.put_flag(A))
                k(f"{skip}:")
            if ks == K_X3C:
                skip = self.lab('x3c')
                k(f"s_cmp_lg_u32 {s(sDUTY)}, 3\ns_cbranch_scc1 {skip}")
                k.many(a_lin(sA0, sSLOT, 9, R_AG))
                self.check_sentinel(range(B, B + 12), B + 12, x3_ld, 14)
                for r in range(4):
                    k(f"v_add_f32 {v(B+r)}, {v(B+r)}, {v(X3O+r)}\nv_add_f32 {v(B+4+r)}, {v(B+4+r)}, {v(B+8+r)}")
                for r in range(4):
                    k(f"v_add_f32 {v(B+r)}, {v(B+r)}, {v(B+4+r)}")
                k(f"""v_cvt_pk_bf16_f32 {v(B)}, {v(B)}, {v(B+1)}
                v_cvt_pk_bf16_f32 {v(B+1)}, {v(B+2)}, {v(B+3)}
                v_min_u32 {v(B)}, -2, {v(B)}
                v_min_u32 {v(B+1)}, -2, {v(B+1)}
                buffer_store_dwordx2 {v(B,2)}, {v(vAG)}, {WS}, {s(sA0)} offen""")
                k.many(self.put_flag(A))
                k(f"{skip}:")
            if ks == K_AGI:
                k(f"""s_add_u32 {s(sA0)}, {s(sSLOT)}, {R_AG}
                s_add_u32 {s(sA1)}, {s(sSLOT)}, {R_AG+4096}""")
                k(fl_ld)
                k.many(ag_ld)
            k.many(xstep(ks))
        x_finish()
        self.stamp(11)
        self.check_sentinel(range(A, A + 10), A + 12, ag_ld, 15)
        k(f"""ds_write_b128 {v(vT16)}, {v(A,4)} offset:{MEM}
        ds_write_b128 {v(vT16)}, {v(A+4,4)} offset:{MEM+4096}
        ds_write_b64 {v(vT8)}, {v(A+8,2)} offset:{MEM}""")
        self.stamp(12)
        self.stamps_out(13, A + 12)
        k(f"""s_add_u32 {s(sS)}, {s(sS)}, 1
        s_add_u32 {s(sT0)}, {s(sSLOT)}, {SLOT}
        s_and_b32 {s(sT0)}, {s(sT0)}, {3*SLOT}
        s_andn2_b32 {s(sSLOT)}, {s(sSLOT)}, {3*SLOT}
        s_or_b32 {s(sSLOT)}, {s(sSLOT)}, {s(sT0)}
        s_branch L_Cstep""")
        self.flush_ool()

    def role_T(self):
        k = self.k
        k("L_roleT:")
        if not self.role_gate('T'):
            return
        WL = 98304
        V = Alloc(4, 256)
        S = Alloc(S_FREE, 102)
        vL = 1
        WV_ = V(160, 4)
        ACC, FB, WB, PK = V(40, 4), V(16, 4), V(8, 4), V(12, 4)
        vT16, vRd, vWr, vSt, vStC, vFl = (V() for _ in range(6))
        FL = V(4, 2)
        sIN, sOUT, sBUF, sPRE, sNH, sKH = (S() for _ in range(6))

        def W(ks, t, c=4, o=0):
            if t < 4:
                n = 4 * ks + t
                return a(4 * n + o, c) if n < 64 else v(WV_ + 4 * (n - 64) + o, c)
            return v(WV_ + 128 + 4 * (ks - 16) + o, c) if ks >= 16 else v(WB + 4 * (ks & 1) + o, c)
        srd(k, S_D, P_WO, 6144 * 1280)
        self.arrive()
        t0, t1, t2, t3, t4, t5, t6, t7 = range(ACC, ACC + 8)
        k(f"""v_and_b32 {v(vL)}, 63, v0
        s_and_b32 {s(sNH)}, {s(sT)}, 1
        s_bfe_u32 {s(sKH)}, {s(sT)}, 0x10001
        s_lshl_b32 {s(sT0)}, {s(sHG)}, 1
        s_add_u32 {s(sKH)}, {s(sKH)}, {s(sT0)}
        s_mul_i32 {s(sT0)}, {s(sKH)}, {768*1280}
        s_mul_i32 {s(sT1)}, {s(sW)}, {8*1280}
        s_add_u32 {s(sT0)}, {s(sT0)}, {s(sT1)}
        s_lshl_b32 {s(sT1)}, {s(sNH)}, 8
        s_add_u32 {s(sT1)}, {s(sT1)}, {s(sT0)}
        v_lshrrev_b32 {v(t0)}, 4, {v(vL)}
        v_mul_u32_u24 {v(t0)}, 1280, {v(t0)}
        v_and_b32 {v(t2)}, 15, {v(vL)}
        v_lshl_add_u32 {v(t0)}, {v(t2)}, 4, {v(t0)}
        v_add_u32 {v(t0)}, {s(sT1)}, {v(t0)}
        s_lshl_b32 {s(sT1)}, {s(sNH)}, 7
        s_add_u32 {s(sT1)}, {s(sT1)}, {s(sT0)}
        s_add_u32 {s(sT1)}, {s(sT1)}, 1024
        v_lshrrev_b32 {v(t1)}, 3, {v(vL)}
        v_mul_u32_u24 {v(t1)}, 1280, {v(t1)}
        v_and_b32 {v(t2)}, 7, {v(vL)}
        v_lshl_add_u32 {v(t1)}, {v(t2)}, 4, {v(t1)}
        v_add_u32 {v(t1)}, {s(sT1)}, {v(t1)}
        v_lshrrev_b32 {v(t2)}, 5, {v(vL)}
        v_lshlrev_b32 {v(t2)}, 4, {v(t2)}
        v_bfe_u32 {v(t3)}, {v(vL)}, 2, 3
        v_add_u32 {v(t2)}, {v(t2)}, {v(t3)}
        v_and_b32 {v(t3)}, 3, {v(vL)}
        v_lshlrev_b32 {v(t4)}, 7, {v(t2)}
        v_lshl_add_u32 {v(t4)}, {v(t3)}, 3, {v(t4)}
        s_lshl_b32 {s(sT0)}, {s(sW)}, 5
        v_add_u32 {v(t4)}, {s(sT0)}, {v(t4)}
        v_lshlrev_b32 {v(t2)}, 1, {v(t4)}
        v_add_u32 {v(t3)}, 40960, {v(t2)}
        v_add_u32 {v(t5)}, 40960, {v(t4)}
        v_lshlrev_b32 {v(vT16)}, 4, v0
        v_lshlrev_b32 {v(vRd)}, 4, {v(vL)}
        s_lshl_b32 {s(sT0)}, {s(sW)}, 14
        s_add_u32 {s(sT0)}, {s(sT0)}, {WL}
        v_add_u32 {v(vWr)}, {s(sT0)}, {v(vRd)}
        s_lshl_b32 {s(sIN)}, {s(sW)}, 11
        s_lshl_b32 {s(sOUT)}, {s(sW)}, 10""")

        def stage(ks):
            sl = (ks % 4) * 20480
            for part in range(2):
                for i in range(2):
                    k(f"""s_mov_b32 {s(sT0)}, {(32*ks+4*i)*1280+512*part}
                    s_add_u32 m0, {s(sIN)}, {sl+8192*part+1024*i}
                    buffer_load_dwordx4 {v(t0)}, {s(S_D,4)}, {s(sT0)} offen lds""")
            k(f"""s_mov_b32 {s(sT0)}, {32*ks*1280}
            s_add_u32 m0, {s(sOUT)}, {sl+16384}
            buffer_load_dwordx4 {v(t1)}, {s(S_D,4)}, {s(sT0)} offen lds""")
        for ks in range(3):
            stage(ks)
        for ks in range(24):
            k(f"s_waitcnt vmcnt({min(10, 5*(23-ks))})")
            self.barrier()
            if ks + 3 < 24:
                stage(ks + 3)
            sl = (ks % 2) * 20480
            hi = (ks % 4) >= 2
            for t in range(4):
                for h in range(2):
                    k(f"ds_read_b64_tr_b16 {W(ks,t,2,2*h)}, {v(t3 if hi else t2)} offset:{sl+8192*(t>>1)+2048*h+8*(t&1)}")
            for h in range(2):
                k(f"ds_read_b64_tr_b16 {W(ks,4,2,2*h)}, {v(t5 if hi else t4)} offset:{sl+16384+1024*h}")
            if ks < 16:
                k(f"ds_write_b128 {v(vWr)}, {W(ks,4)} offset:{ks*1024}")
        k(f"""v_and_b32 {v(t0)}, 15, {v(vL)}
        v_lshrrev_b32 {v(t1)}, 4, {v(vL)}
        v_lshlrev_b32 {v(vStC)}, 5, {v(t0)}
        v_lshl_add_u32 {v(vStC)}, {v(t1)}, 3, {v(vStC)}
        v_lshlrev_b32 {v(vSt)}, 1, {v(vStC)}
        s_lshl_b32 {s(sT0)}, {s(sNH)}, 2
        s_add_u32 {s(sT0)}, {s(sT0)}, {s(sW)}
        s_mul_i32 {s(sT0)}, {s(sT0)}, 5120
        v_add_u32 {v(vSt)}, {s(sT0)}, {v(vSt)}
        s_add_u32 {s(sT0)}, {s(sT0)}, 4096
        v_add_u32 {v(vStC)}, {s(sT0)}, {v(vStC)}
        v_min_u32 {v(vFl)}, 11, {v(vL)}
        s_and_b32 {s(sT0)}, {s(sKH)}, 1
        s_mul_i32 {s(sT0)}, {s(sT0)}, 12
        s_lshl_b32 {s(sT1)}, {s(sX)}, 5
        s_add_u32 {s(sT0)}, {s(sT0)}, {s(sT1)}
        v_add_u32 {v(vFl)}, {s(sT0)}, {v(vFl)}
        v_lshlrev_b32 {v(vFl)}, 7, {v(vFl)}
        v_add_u32 {v(vFl)}, {FLAGS}, {v(vFl)}
        s_lshl_b32 {s(sT0)}, {s(sL)}, 9
        s_add_u32 {s(sT0)}, {s(sT0)}, {s(sKH)}
        s_mul_i32 {s(sIN)}, {s(sT0)}, 49152
        s_add_u32 {s(sIN)}, {s(sIN)}, {OX}
        s_mul_i32 {s(sOUT)}, {s(sT0)}, 40960
        s_add_u32 {s(sOUT)}, {s(sOUT)}, {PA}
        s_lshl_b32 {s(sBUF)}, {s(sW)}, 10
        s_mov_b32 {s(sPRE)}, 0""")
        self.wait_grid()
        self.barrier()
        fl_ld = f"buffer_load_dwordx4 {v(FL,4)}, {v(vFl)}, {WS}, 0 offen sc1"

        def dma():
            out = []
            for i in range(12):
                off = (i & 1) * 24576 + (i >> 1) * 4096
                out.append([f"s_add_u32 m0, {s(sBUF)}, {off}", f"s_add_u32 {s(sT0)}, {s(sIN)}, {off}",
                            f"buffer_load_dwordx4 {v(vT16)}, {WS}, {s(sT0)} offen sc1 lds"])
            out.append([f"s_add_u32 {s(sIN)}, {s(sIN)}, {8*49152}", f"s_xor_b32 {s(sBUF)}, {s(sBUF)}, 49152"])
            return out

        def rd(ks):
            out = [f"ds_read_b128 {v(FB+8*(ks&1)+4*mt,4)}, {v(vRd)} offset:{mt*24576+ks*1024}" for mt in range(2)]
            if ks < 16:
                out.append(f"ds_read_b128 {W(ks,4)}, {v(vWr)} offset:{ks*1024}")
            return out
        self.sST = 32
        k(f"""L_Tseg:
        s_cmp_lg_u32 {s(sPRE)}, 0
        s_cbranch_scc1 L_Thave
        s_add_u32 {s(sT1)}, {s(sS)}, 1
        {fl_ld}""")
        self.check_flags(FL, PK, sT1, [fl_ld], 20)
        for d in dma():
            k.many(d)
        k("L_Thave:")
        self.stamp(0)
        k("s_waitcnt vmcnt(10)\ns_barrier")
        self.stamp(1)
        k.many(rd(0))
        for ks in range(24):
            if ks == 3:
                k("s_waitcnt vmcnt(0)\ns_barrier")
            if ks == 14:
                k(fl_ld)
            if ks == 19:
                k(f"""s_mov_b32 {s(sPRE)}, 0
                s_add_u32 {s(sT1)}, {s(sS)}, 2""")
                self.check_flags(FL, PK, sT1, None, 0, notready='L_Tnopre')
                k(f"s_mov_b32 {s(sPRE)}, 1")
                for d in dma():
                    k.many(d)
                k("L_Tnopre:")
            ms = []
            for mt in range(2):
                for t in (0, 1, 2, 3, 4):
                    acc = v(ACC + 20 * mt + 4 * t, 4)
                    ms.append(f"v_mfma_f32_16x16x32_bf16 {acc}, {W(ks,t)}, {v(FB+8*(ks&1)+4*mt,4)}, {acc if ks else 0}")
            k.many(weave(ms, rd(ks + 1) if ks < 23 else []))
        k(f"v_xor_b32 {v(vRd)}, 49152, {v(vRd)}")
        self.stamp(2)
        for mt in range(2):
            for i in range(10):
                k(f"v_cvt_pk_bf16_f32 {v(ACC+20*mt+i)}, {v(ACC+20*mt+2*i)}, {v(ACC+20*mt+2*i+1)}")
            k(f"""buffer_store_dwordx4 {v(ACC+20*mt,4)}, {v(vSt)}, {WS}, {s(sOUT)} offen offset:{mt*1024} sc1
            buffer_store_dwordx4 {v(ACC+20*mt+4,4)}, {v(vSt)}, {WS}, {s(sOUT)} offen offset:{2048+mt*1024} sc1
            buffer_store_dwordx2 {v(ACC+20*mt+8,2)}, {v(vStC)}, {WS}, {s(sOUT)} offen offset:{mt*512} sc1""")
        self.stamp(3)
        k(f"s_add_u32 {s(sOUT)}, {s(sOUT)}, {8*40960}\ns_waitcnt vmcnt(0)")
        k.many(self.put_flag(PK))
        self.stamp(4)
        self.stamps_out(5, PK + 2)
        k(f"""s_add_u32 {s(sS)}, {s(sS)}, 1
        s_cmp_lt_u32 {s(sS)}, 64
        s_cbranch_scc1 L_Tseg
        s_endpgm""")
        self.flush_ool()

    def role_B(self):
        k = self.k
        k("L_roleB:")
        if not self.role_gate('B'):
            return
        OB, MK, XT = 0, 5120, 8192
        V = Alloc(4, 256)
        S = Alloc(S_FREE, 102)
        vL = 1
        WS_, WO_ = V(80, 4), V(84, 4)
        ACC, FB = V(32, 4), V(24, 4)
        KP, VM, VE = V(4, 4), V(6, 2), V(6, 2)
        vE, vOne, vXsrc, vXr0, vXr1, vL16, vMk0, vOw, vOw2, vSt, vStC, vFl = (V() for _ in range(12))
        FL = V(4, 2)
        sIN, sOUT, sBUF, sPRE, sB, sC, sXS, sBD = (S() for _ in range(8))

        def W(m, ks, c=4, o=0):
            return a(80 * m + 4 * ks + o, c) if m < 3 else v(WS_ + 4 * ks + o, c)

        def WO(n, part, c, o=0):
            if part == 2:
                return a(240 + 2 * n + o, c) if n < 8 else v(WO_ + 80 + 2 * (n - 8) + o, c)
            return v(WO_ + 8 * n + 4 * part + o, c)
        srd(k, S_C, P_WQKV, 640 * 3840)
        srd(k, S_D, P_BWO, 640 * 1280)
        self.arrive()
        t0, t1, t2, t3, t4, t5, t6, t7 = range(ACC, ACC + 8)
        g_, rr, c_ = ACC + 8, ACC + 9, ACC + 10
        k(f"""v_and_b32 {v(vL)}, 63, v0
        s_lshl_b32 {s(sB)}, {s(sHG)}, 1
        s_and_b32 {s(sT0)}, {s(sT)}, 1
        s_add_u32 {s(sB)}, {s(sB)}, {s(sT0)}
        v_lshrrev_b32 {v(g_)}, 4, {v(vL)}
        v_bfe_u32 {v(rr)}, {v(vL)}, 2, 2
        v_and_b32 {v(c_)}, 3, {v(vL)}
        v_lshlrev_b32 {v(vL16)}, 4, {v(vL)}
        v_and_b32 {v(t1)}, 31, {v(vL)}
        v_mul_u32_u24 {v(t2)}, 26, {v(t1)}
        v_lshrrev_b32 {v(t2)}, 8, {v(t2)}
        v_mul_u32_u24 {v(t0)}, {1280-160}, {v(t2)}
        v_lshl_add_u32 {v(t0)}, {v(t1)}, 4, {v(t0)}
        v_lshrrev_b32 {v(t2)}, 5, v0
        v_mul_u32_u24 {v(t2)}, 3840, {v(t2)}
        s_mul_i32 {s(sT0)}, {s(sB)}, 160
        v_add3_u32 {v(t0)}, {v(t0)}, {v(t2)}, {s(sT0)}
        v_mov_b32 {v(t2)}, {OOB:#x}
        v_cmp_gt_u32 vcc, 30, {v(t1)}
        v_cndmask_b32 {v(t0)}, {v(t2)}, {v(t0)}, vcc
        v_lshl_add_u32 {v(t1)}, {v(g_)}, 3, {v(rr)}
        v_lshlrev_b32 {v(t1)}, 9, {v(t1)}
        s_mul_i32 {s(sT0)}, {s(sW)}, 40
        v_mul_u32_u24 {v(t3)}, 160, {v(c_)}
        s_add_u32 {s(sT1)}, {s(sT0)}, 32
        v_mov_b32 {v(t4)}, {s(sT1)}
        v_cmp_gt_u32 vcc, 3, {v(c_)}
        v_cndmask_b32 {v(t4)}, 0, {v(t4)}, vcc
        v_add3_u32 {v(t3)}, {v(t3)}, {v(t4)}, {v(t1)}
        v_lshl_add_u32 {v(t1)}, {v(c_)}, 3, {v(t1)}
        v_add_u32 {v(t1)}, {s(sT0)}, {v(t1)}
        v_add_u32 {v(t2)}, 65536, {v(t1)}
        v_add_u32 {v(t4)}, 65536, {v(t3)}
        v_lshl_add_u32 {v(t5)}, {v(c_)}, 2, {v(rr)}
        v_lshl_add_u32 {v(t5)}, {v(g_)}, 4, {v(t5)}
        v_lshlrev_b32 {v(t5)}, 2, {v(t5)}
        s_lshl_b32 {s(sIN)}, {s(sW)}, 10""")

        def stage(ks):
            for i in range(4):
                k(f"""s_mov_b32 {s(sT0)}, {(32*ks+8*i)*3840}
                s_add_u32 m0, {s(sIN)}, {(ks%8)*16384+4096*i}
                buffer_load_dwordx4 {v(t0)}, {s(S_C,4)}, {s(sT0)} offen lds""")
        for ks in range(7):
            stage(ks)
        for ks in range(20):
            k(f"s_waitcnt vmcnt({min(24, 4*(19-ks))})")
            self.barrier()
            if ks + 7 < 20:
                stage(ks + 7)
            sl = (ks % 4) * 16384
            hi = (ks % 8) >= 4
            for h in range(2):
                k(f"ds_read_b64_tr_b16 {v(FB+2*h,2)}, {v(t4 if hi else t3)} offset:{sl+2048*h}")
            for m in range(3):
                for h in range(2):
                    k(f"ds_read_b64_tr_b16 {W(m,ks,2,2*h)}, {v(t2 if hi else t1)} offset:{sl+2048*h+160*m}")
            for r in range(4):
                k(f"ds_bpermute_b32 {W(3,ks,1,r)}, {v(t5)}, {v(FB+r)}")
        self.barrier()
        lp = self.lab('stgb')
        k(f"""v_lshlrev_b32 {v(t0)}, 4, v0
        s_mul_i32 {s(sT0)}, {s(sB)}, {80*1280}
        s_add_u32 {s(sT1)}, {s(sT0)}, {80*1280}
        s_mov_b32 m0, {s(sIN)}
        {lp}:
        buffer_load_dwordx4 {v(t0)}, {s(S_D,4)}, {s(sT0)} offen lds
        s_add_u32 m0, m0, 4096
        s_add_u32 {s(sT0)}, {s(sT0)}, 4096
        s_cmp_lt_u32 {s(sT0)}, {s(sT1)}
        s_cbranch_scc1 {lp}
        v_lshl_add_u32 {v(t1)}, {v(g_)}, 2, {v(rr)}
        v_mul_u32_u24 {v(t1)}, 1280, {v(t1)}
        v_mul_u32_u24 {v(t3)}, 20, {v(rr)}
        v_add3_u32 {v(t3)}, {v(t3)}, {v(g_)}, 16
        v_mul_u32_u24 {v(t3)}, 1280, {v(t3)}
        s_lshl_b32 {s(sT0)}, {s(sW)}, 6
        v_lshl_add_u32 {v(t5)}, {v(c_)}, 3, {s(sT0)}
        v_add_u32 {v(t2)}, {v(t1)}, {v(t5)}
        v_add_u32 {v(t4)}, {v(t3)}, {v(t5)}
        v_lshl_add_u32 {v(t1)}, {v(t5)}, 1, {v(t1)}
        v_lshl_add_u32 {v(t3)}, {v(t5)}, 1, {v(t3)}
        v_add_u32 {v(t6)}, 51200, {v(t1)}
        v_add_u32 {v(t7)}, 51200, {v(t2)}
        s_waitcnt vmcnt(0)
        s_barrier""")
        for vi in range(2):
            for t in range(5):
                col = vi * 64 + 512 * (t >> 1) + 8 * (t & 1) if t < 4 else 1024 + vi * 32
                for kk in range(2):
                    for h in range(2):
                        base = ((t1, t6), (t2, t7))[t == 4][kk]
                        k(f"ds_read_b64_tr_b16 {WO(5*vi+t,kk,2,2*h)}, {v(base)} offset:{h*25600+col}")
                k(f"ds_read_b64_tr_b16 {WO(5*vi+t,2,2)}, {v(t4 if t == 4 else t3)} offset:{col}")
        self.barrier()
        j_, hf, u0, u1 = ACC + 11, ACC + 12, ACC + 13, ACC + 14
        k(f"""v_and_b32 {v(j_)}, 7, {v(vL)}
        v_bfe_u32 {v(hf)}, {v(vL)}, 3, 1
        v_lshrrev_b32 {v(u0)}, 3, v0
        v_mul_u32_u24 {v(vXsrc)}, 1280, {v(u0)}
        v_and_b32 {v(u0)}, 7, {v(u0)}
        v_xor_b32 {v(u0)}, {v(u0)}, {v(j_)}
        v_lshl_add_u32 {v(vXsrc)}, {v(u0)}, 4, {v(vXsrc)}
        v_mul_u32_u24 {v(vXr0)}, 10240, {v(hf)}
        v_lshl_add_u32 {v(vXr0)}, {v(j_)}, 7, {v(vXr0)}
        v_xor_b32 {v(u0)}, {v(g_)}, {v(j_)}
        v_lshl_add_u32 {v(vXr0)}, {v(u0)}, 4, {v(vXr0)}
        v_xor_b32 {v(vXr1)}, 64, {v(vXr0)}
        v_and_b32 {v(t0)}, 15, {v(vL)}
        v_lshlrev_b32 {v(u0)}, 2, {v(g_)}
        v_cmp_eq_u32 vcc, {v(t0)}, {v(u0)}
        v_cndmask_b32 {v(vE)}, 0, 1.0, vcc
        v_mov_b32 {v(u1)}, 0x3f803f80
        v_cmp_eq_u32 vcc, 1, {v(c_)}
        v_cndmask_b32 {v(vOne)}, 0, {v(u1)}, vcc
        v_sub_u32 {v(u0)}, {v(t0)}, {v(u0)}
        v_mov_b32 {v(u1)}, 0xff800000""")
        for blk, add in ((0, 16), (1, 0)):
            for r in range(4):
                k(f"""v_add_u32 {v(t1)}, {add-r}, {v(u0)}
                v_and_b32 {v(t1)}, 0xfffffff1, {v(t1)}
                v_cmp_eq_u32 vcc, 0, {v(t1)}
                v_cndmask_b32 {v(FB+4*blk+r)}, {v(u1)}, 0, vcc""")
        for r in range(4):
            k(f"v_mov_b32 {v(FB+8+r)}, {v(u1)}\nv_mov_b32 {v(KP+r)}, 0")
        for blk in range(3):
            k(f"ds_write_b128 {v(vL16)}, {v(FB+4*blk,4)} offset:{MK+1024*blk}")
        k(f"""v_mov_b32 {v(VM)}, 0
        v_mov_b32 {v(VM+1)}, 0
        v_mov_b32 {v(VE)}, 0
        v_mov_b32 {v(VE+1)}, 0
        v_add_u32 {v(vMk0)}, 2048, {v(vL16)}
        s_lshr_b32 {s(sT0)}, {s(sW)}, 1
        s_lshl_b32 {s(sT0)}, {s(sT0)}, 10
        s_and_b32 {s(sT1)}, {s(sW)}, 1
        s_lshl_b32 {s(sT1)}, {s(sT1)}, 3
        s_add_u32 {s(sT0)}, {s(sT0)}, {s(sT1)}
        v_add_u32 {v(vOw)}, {s(sT0)}, {v(vL16)}
        s_lshl_b32 {s(sT0)}, {s(sW)}, 1
        v_lshl_add_u32 {v(vOw2)}, {v(vL)}, 3, {s(sT0)}
        v_lshlrev_b32 {v(vStC)}, 5, {v(t0)}
        v_lshl_add_u32 {v(vStC)}, {v(g_)}, 3, {v(vStC)}
        v_lshlrev_b32 {v(vSt)}, 1, {v(vStC)}
        s_mul_i32 {s(sT0)}, {s(sW)}, 10240
        v_add_u32 {v(vSt)}, {s(sT0)}, {v(vSt)}
        s_add_u32 {s(sT0)}, {s(sT0)}, 4096
        v_add_u32 {v(vStC)}, {s(sT0)}, {v(vStC)}
        s_lshl_b32 {s(sT0)}, {s(sL)}, 14
        s_add_u32 {s(sT0)}, {s(sT0)}, {FLAGS+30*128}
        v_lshl_add_u32 {v(vFl)}, {v(c_)}, 12, {s(sT0)}
        s_mul_i32 {s(sIN)}, {s(sL)}, {XSZ}
        s_add_u32 {s(sIN)}, {s(sIN)}, {HB}
        s_lshl_b32 {s(sT0)}, {s(sL)}, 9
        s_add_u32 {s(sT0)}, {s(sT0)}, {s(sB)}
        s_mul_i32 {s(sOUT)}, {s(sT0)}, 40960
        s_add_u32 {s(sOUT)}, {s(sOUT)}, {PB}
        s_mul_i32 {s(sBUF)}, {s(sW)}, 10240
        s_mov_b32 {s(sXS)}, 40960
        s_mov_b32 {s(sBD)}, 40960
        s_mov_b32 {s(sC)}, {f2u(20**-0.5*math.log2(math.e))}
        s_mov_b32 {s(sPRE)}, 0""")
        self.wait_grid()
        fl_ld = f"buffer_load_dwordx4 {v(FL,4)}, {v(vFl)}, {WS}, 0 offen sc1"

        def dma():
            out = []
            for cb in range(10):
                out.append([f"s_add_u32 m0, {s(sBUF)}, {XT+cb*896}",
                            f"buffer_load_dwordx4 {v(vXsrc)}, {WS}, {s(sIN)} offen offset:{cb*128} sc1 lds"])
            out.append([f"s_add_u32 {s(sIN)}, {s(sIN)}, {TILE}", f"s_add_u32 {s(sBUF)}, {s(sBUF)}, {s(sBD)}",
                        f"s_sub_u32 {s(sBD)}, 0, {s(sBD)}"])
            return out

        def rd(ks):
            return [f"ds_read_b128 {v(FB+8*(ks%3)+4*mt,4)}, {v(vXr1 if ks & 1 else vXr0)} offset:{XT+mt*20480+(ks>>1)*1024}" for mt in range(2)]
        self.sST = 32
        k(f"""L_Bseg:
        s_cmp_lg_u32 {s(sPRE)}, 0
        s_cbranch_scc1 L_Bhave
        s_add_u32 {s(sT1)}, {s(sS)}, 1
        {fl_ld}""")
        self.check_flags(FL, 2, sT1, [fl_ld], 30)
        for d in dma():
            k.many(d)
        k("L_Bhave:")
        self.stamp(0)
        k("s_waitcnt vmcnt(7) lgkmcnt(0)\ns_barrier")
        self.stamp(1)
        k.many(rd(0) + rd(1))
        for ks in range(20):
            if ks == 4:
                k("s_waitcnt vmcnt(0)\ns_barrier")
            ms = []
            for mt in range(2):
                f = v(FB + 8 * (ks % 3) + 4 * mt, 4)
                for m in range(4):
                    acc = v(ACC + 16 * mt + 4 * m, 4)
                    x, y = (f, W(m, ks)) if m == 2 else (W(m, ks), f)
                    ms.append(f"v_mfma_f32_16x16x32_bf16 {acc}, {x}, {y}, {acc if ks else 0}")
            k.many(weave(ms, rd(ks + 2) if ks < 18 else []))
        self.stamp(2)
        k(fl_ld)
        k(f"""v_add_u32 {v(vXr0)}, {s(sXS)}, {v(vXr0)}
        v_add_u32 {v(vXr1)}, {s(sXS)}, {v(vXr1)}
        s_sub_u32 {s(sXS)}, 0, {s(sXS)}""")
        Q, K_, T = FB, FB + 8, FB + 16
        for mt in range(2):
            ac = ACC + 16 * mt
            k(f"""v_mfma_f32_16x16x4_f32 {v(T+4*mt,4)}, {v(ac+14)}, {v(vE)}, 0
            v_cvt_pk_bf16_f32 {v(Q+4*mt)}, {v(ac)}, {v(ac+1)}
            v_cvt_pk_bf16_f32 {v(Q+4*mt+1)}, {v(ac+2)}, {v(ac+3)}
            v_cvt_pk_bf16_f32 {v(Q+4*mt+2)}, {v(ac+12)}, 0
            v_mov_b32 {v(Q+4*mt+3)}, 0
            v_cvt_pk_bf16_f32 {v(K_+4*mt)}, {v(ac+4)}, {v(ac+5)}
            v_cvt_pk_bf16_f32 {v(K_+4*mt+1)}, {v(ac+6)}, {v(ac+7)}
            v_cvt_pk_bf16_f32 {v(K_+4*mt+2)}, {v(ac+13)}, 0
            v_mov_b32 {v(K_+4*mt+3)}, 0
            v_cvt_pk_bf16_f32 {v(VM+2+2*mt)}, {v(ac+8)}, {v(ac+9)}
            v_cvt_pk_bf16_f32 {v(VM+3+2*mt)}, {v(ac+10)}, {v(ac+11)}
            ds_read_b128 {v(ac,4)}, {v(vL16 if mt else vMk0)} offset:{MK}
            ds_read_b128 {v(ac+4,4)}, {v(vL16)} offset:{MK+1024}""")
        for mt in range(2):
            k(f"""v_cvt_pk_bf16_f32 {v(VE+2+2*mt)}, {v(T+4*mt)}, {v(T+4*mt+1)}
            v_cvt_pk_bf16_f32 {v(VE+3+2*mt)}, {v(T+4*mt+2)}, {v(T+4*mt+3)}
            v_or_b32 {v(VE+2+2*mt)}, {v(vOne)}, {v(VE+2+2*mt)}
            v_or_b32 {v(VE+3+2*mt)}, {v(vOne)}, {v(VE+3+2*mt)}""")
        k(f"""v_mfma_f32_16x16x32_bf16 {v(ACC,4)}, {v(KP,4)}, {v(Q,4)}, {v(ACC,4)}
        v_mfma_f32_16x16x32_bf16 {v(ACC+4,4)}, {v(K_,4)}, {v(Q,4)}, {v(ACC+4,4)}
        v_mfma_f32_16x16x32_bf16 {v(ACC+16,4)}, {v(K_,4)}, {v(Q+4,4)}, {v(ACC+16,4)}
        v_mfma_f32_16x16x32_bf16 {v(ACC+20,4)}, {v(K_+4,4)}, {v(Q+4,4)}, {v(ACC+20,4)}
        v_mov_b32 {v(vMk0)}, {v(vL16)}""")
        for r in range(3):
            k(f"v_mov_b32 {v(KP+r)}, {v(K_+4+r)}")
        seq = [[], []]
        for mt in range(2):
            x, t = ACC + 16 * mt, T + 2 * mt
            q = seq[mt]
            q += [f"v_max3_f32 {v(t)}, {v(x)}, {v(x+1)}, {v(x+2)}", f"v_max3_f32 {v(t+1)}, {v(x+3)}, {v(x+4)}, {v(x+5)}",
                  f"v_max3_f32 {v(t)}, {v(t)}, {v(x+6)}, {v(x+7)}", f"v_max_f32 {v(t)}, {v(t)}, {v(t+1)}",
                  f"v_mov_b32 {v(t+1)}, {v(t)}", f"v_permlane16_swap_b32 {v(t)}, {v(t+1)}", f"v_max_f32 {v(t)}, {v(t)}, {v(t+1)}",
                  f"v_mov_b32 {v(t+1)}, {v(t)}", f"v_permlane32_swap_b32 {v(t)}, {v(t+1)}", f"v_max_f32 {v(t)}, {v(t)}, {v(t+1)}",
                  f"v_mul_f32 {v(t)}, {s(sC)}, {v(t)}"]
            q += [f"v_fma_f32 {v(x+r)}, {v(x+r)}, {s(sC)}, -{v(t)}" for r in range(8)]
            q += [f"v_exp_f32 {v(x+r)}, {v(x+r)}" for r in range(8)]
            q += [f"v_cvt_pk_bf16_f32 {v(x+r)}, {v(x+2*r)}, {v(x+2*r+1)}" for r in range(4)]
            q += [f"v_mfma_f32_16x16x32_bf16 {v(x+12,4)}, {v(VE+2*mt,4)}, {v(x,4)}, 0",
                  f"v_mfma_f32_16x16x32_bf16 {v(x+8,4)}, {v(VM+2*mt,4)}, {v(x,4)}, 0"]
        for p, q in zip(*seq):
            k(p + '\n' + q)
        k(f"""v_mov_b32 {v(VM)}, {v(VM+4)}
        v_mov_b32 {v(VM+1)}, {v(VM+5)}
        v_mov_b32 {v(VE)}, {v(VE+4)}
        v_mov_b32 {v(VE+1)}, {v(VE+5)}
        s_mov_b32 {s(sPRE)}, 0
        s_add_u32 {s(sT1)}, {s(sS)}, 2""")
        seq = [[], []]
        for mt in range(2):
            x = ACC + 16 * mt
            q = seq[mt]
            q += [f"v_rcp_f32 {v(x+13)}, {v(x+13)}"]
            q += [f"v_mul_f32 {v(x+8+r)}, {v(x+8+r)}, {v(x+13)}" for r in range(5)]
            q += [f"v_cvt_pk_bf16_f32 {v(x)}, {v(x+8)}, {v(x+9)}", f"v_cvt_pk_bf16_f32 {v(x+1)}, {v(x+10)}, {v(x+11)}",
                  f"v_cvt_pk_bf16_f32 {v(x+2)}, {v(x+12)}, {v(x+12)}",
                  f"ds_write_b64 {v(vOw)}, {v(x,2)} offset:{OB+2048*mt}", f"ds_write_b16 {v(vOw2)}, {v(x+2)} offset:{OB+4096+512*mt}"]
        for p, q in zip(*seq):
            k(p + '\n' + q)
        k(f"v_lshrrev_b32 v3, 1, {v(vL16)}")
        self.barrier()
        self.stamp(3)
        for mt in range(2):
            k(f"""ds_read_b64 {v(FB+10*mt+8,2)}, v3 offset:{OB+4096+512*mt}
            ds_read_b128 {v(FB+10*mt,4)}, {v(vL16)} offset:{OB+2048*mt}
            ds_read_b128 {v(FB+10*mt+4,4)}, {v(vL16)} offset:{OB+2048*mt+1024}""")
        self.check_flags(FL, 2, sT1, None, 0, notready='L_Bnopre')
        k(f"s_mov_b32 {s(sPRE)}, 1")
        for d in dma():
            k.many(d)
        k(f"L_Bnopre:\ns_add_u32 {s(sT1)}, {s(sOUT)}, 5120")
        tail = []
        for n, (mt, vi) in enumerate(((0, 0), (0, 1), (1, 0), (1, 1))):
            ac = [ACC + 16 * (n & 1) + 4 * t for t in range(4)] + [(FB + 20, FL)[n & 1]]
            ms = []
            for kk in (2, 0, 1):
                for t in range(5):
                    d = v(ac[t], 4)
                    if kk < 2:
                        ms.append(f"v_mfma_f32_16x16x32_bf16 {d}, {WO(5*vi+t,kk,4)}, {v(FB+10*mt+4*kk,4)}, {d}")
                    else:
                        ms.append(f"v_mfma_f32_16x16x16_bf16 {d}, {WO(5*vi+t,2,2)}, {v(FB+10*mt+8,2)}, 0")
            k.many(weave(ms, tail, start=1))
            so = s(sT1 if vi else sOUT)
            tail = []
            for part in range(3):
                b = ac[2 * part]
                tail += [f"v_cvt_pk_bf16_f32 {v(b+i)}, {v(b+2*i)}, {v(b+2*i+1)}" for i in range(4 if part < 2 else 2)]
                if part < 2:
                    tail.append(f"buffer_store_dwordx4 {v(b,4)}, {v(vSt)}, {WS}, {so} offen offset:{2048*part+1024*mt} sc1")
                else:
                    tail.append(f"buffer_store_dwordx2 {v(b,2)}, {v(vStC)}, {WS}, {so} offen offset:{512*mt} sc1")
        k.many(tail)
        self.stamp(4)
        k(f"s_add_u32 {s(sOUT)}, {s(sOUT)}, {8*40960}\ns_waitcnt vmcnt(0)")
        k.many(self.put_flag(2))
        self.stamp(5)
        self.stamps_out(6, FB)
        k(f"""s_add_u32 {s(sS)}, {s(sS)}, 1
        s_cmp_lt_u32 {s(sS)}, 64
        s_cbranch_scc1 L_Bseg
        s_endpgm""")
        self.flush_ool()

    def role_R(self):
        k = self.k
        k("L_roleR:")
        if not self.role_gate('R'):
            return
        V = Alloc(4, 256)
        S = Alloc(S_FREE, 102)
        LD, RES, F, T = V(80, 4), V(12, 4), V(20, 4), V(4, 4)
        vPa, vPc, vRa, vRc, vFl = (V() for _ in range(5))
        FL = V(4, 2)
        sIN, sRES, sXD, sHD, sK, sLO, sHI = (S() for _ in range(7))
        self.arrive()
        k(f"""s_and_b32 {s(sT0)}, {s(sT)}, 1
        s_lshl_b32 {s(sK)}, {s(sL)}, 1
        s_add_u32 {s(sK)}, {s(sK)}, {s(sT0)}
        s_cmp_eq_u32 {s(sK)}, 0
        s_cselect_b32 {s(S_B)}, {s(P_X)}, {s(P_WS)}
        s_cselect_b32 {s(S_B+1)}, {s(P_X+1)}, {s(P_WS+1)}
        s_cselect_b32 {s(S_B+2)}, {XSZ}, {s(S_WS+2)}
        s_mov_b32 {s(S_B+3)}, 0x20000
        s_cmp_eq_u32 {s(sK)}, 3
        s_cselect_b32 {s(S_C)}, {s(P_OUT)}, {s(P_WS)}
        s_cselect_b32 {s(S_C+1)}, {s(P_OUT+1)}, {s(P_WS+1)}
        s_cselect_b32 {s(S_C+2)}, {XSZ}, {s(S_WS+2)}
        s_mov_b32 {s(S_C+3)}, 0x20000
        s_mov_b32 {s(sRES)}, 0
        s_mov_b32 {s(sXD)}, {X1B}
        s_mov_b32 {s(sHD)}, {HB}""")
        for kk, (r, x, h) in ((1, (X1B, X2B, HA + XSZ)), (2, (X2B, X1B + XSZ, HB + XSZ)), (3, (X1B + XSZ, 0, 0))):
            k(f"""s_cmp_eq_u32 {s(sK)}, {kk}
            s_cselect_b32 {s(sRES)}, {r}, {s(sRES)}
            s_cselect_b32 {s(sXD)}, {x}, {s(sXD)}
            s_cselect_b32 {s(sHD)}, {h}, {s(sHD)}""")
        tk, c_, u0, u1 = F, F + 1, F + 2, F + 3
        k(f"""s_mov_b32 {s(sIN)}, {PB}
        s_cmp_eq_u32 {s(sT0)}, 0
        s_cselect_b32 {s(sIN)}, {PA}, {s(sIN)}
        s_cselect_b32 {s(sT1)}, 24, 28
        s_cselect_b32 {s(sT2)}, 3, 1
        s_mul_i32 {s(sT0)}, {s(sL)}, {64*8*40960}
        s_add_u32 {s(sIN)}, {s(sIN)}, {s(sT0)}
        v_lshrrev_b32 {v(tk)}, 5, v0
        s_lshl_b32 {s(sT0)}, {s(sHG)}, 3
        v_add_u32 {v(tk)}, {s(sT0)}, {v(tk)}
        v_and_b32 {v(c_)}, 31, v0
        v_mul_u32_u24 {v(u0)}, 1280, {v(tk)}
        v_lshl_add_u32 {v(vRa)}, {v(c_)}, 4, {v(u0)}
        v_lshl_add_u32 {v(vRc)}, {v(c_)}, 3, {v(u0)}
        v_lshrrev_b32 {v(u0)}, 2, {v(c_)}
        v_mul_u32_u24 {v(u0)}, 5120, {v(u0)}
        v_and_b32 {v(u1)}, 3, {v(c_)}
        v_lshlrev_b32 {v(u1)}, 3, {v(u1)}
        v_lshl_add_u32 {v(u1)}, {v(tk)}, 5, {v(u1)}
        v_lshl_add_u32 {v(vPa)}, {v(u1)}, 1, {v(u0)}
        v_add_u32 {v(vPc)}, {v(u1)}, {v(u0)}
        v_add_u32 {v(vPc)}, 4096, {v(vPc)}
        v_and_b32 {v(u0)}, {s(sT2)}, v0
        v_add_u32 {v(u0)}, {s(sT1)}, {v(u0)}
        v_bfe_u32 {v(u1)}, v0, 2, 2
        v_lshl_add_u32 {v(u0)}, {v(u1)}, 5, {v(u0)}
        s_lshl_b32 {s(sT0)}, {s(sL)}, 14
        s_add_u32 {s(sT0)}, {s(sT0)}, {FLAGS}
        v_lshl_add_u32 {v(vFl)}, {v(u0)}, 7, {s(sT0)}
        s_mov_b32 {s(sLO)}, 0x3f80
        s_mov_b32 {s(sHI)}, 0x3f800000""")
        self.wait_grid()
        fl_ld = f"buffer_load_dwordx4 {v(FL,4)}, {v(vFl)}, {WS}, 0 offen sc1"
        self.sST = 32
        k(f"""L_Rseg:
        s_add_u32 {s(sT1)}, {s(sS)}, 1
        {fl_ld}""")
        self.check_flags(FL, T, sT1, [fl_ld], 40)
        self.stamp(0)
        k(f"""buffer_load_dwordx4 {v(RES,4)}, {v(vRa)}, {s(S_B,4)}, {s(sRES)} offen sc1
        buffer_load_dwordx4 {v(RES+4,4)}, {v(vRa)}, {s(S_B,4)}, {s(sRES)} offen offset:512 sc1
        buffer_load_dwordx2 {v(RES+8,2)}, {v(vRc)}, {s(S_B,4)}, {s(sRES)} offen offset:1024 sc1""")
        for p in range(8):
            k(f"""buffer_load_dwordx4 {v(LD+10*p,4)}, {v(vPa)}, {WS}, {s(sIN)} offen sc1
            buffer_load_dwordx4 {v(LD+10*p+4,4)}, {v(vPa)}, {WS}, {s(sIN)} offen offset:2048 sc1
            buffer_load_dwordx2 {v(LD+10*p+8,2)}, {v(vPc)}, {WS}, {s(sIN)} offen sc1
            s_add_u32 {s(sIN)}, {s(sIN)}, 40960""")
        k(f"s_add_u32 {s(sRES)}, {s(sRES)}, {TILE}")
        for i in range(10):
            k(f"v_lshlrev_b32 {v(F+2*i)}, 16, {v(RES+i)}\nv_and_b32 {v(F+2*i+1)}, 0xffff0000, {v(RES+i)}")
        self.stamp(1)
        for p in range(8):
            for i in range(10):
                k(f"""v_dot2_f32_bf16 {v(F+2*i)}, {v(LD+10*p+i)}, {s(sLO)}, {v(F+2*i)}
                v_dot2_f32_bf16 {v(F+2*i+1)}, {v(LD+10*p+i)}, {s(sHI)}, {v(F+2*i+1)}""")
        for i in range(10):
            k(f"v_cvt_pk_bf16_f32 {v(RES+i)}, {v(F+2*i)}, {v(F+2*i+1)}")
        k(f"""buffer_store_dwordx4 {v(RES,4)}, {v(vRa)}, {s(S_C,4)}, {s(sXD)} offen sc1
        buffer_store_dwordx4 {v(RES+4,4)}, {v(vRa)}, {s(S_C,4)}, {s(sXD)} offen offset:512 sc1
        buffer_store_dwordx2 {v(RES+8,2)}, {v(vRc)}, {s(S_C,4)}, {s(sXD)} offen offset:1024 sc1
        s_add_u32 {s(sXD)}, {s(sXD)}, {TILE}""")
        self.stamp(2)
        k(f"""s_cmp_eq_u32 {s(sK)}, 3
        s_cbranch_scc1 L_Rnext""")
        self.layernorm(RES, F, T)
        k(f"""buffer_store_dwordx4 {v(RES,4)}, {v(vRa)}, {WS}, {s(sHD)} offen sc1
        buffer_store_dwordx4 {v(RES+4,4)}, {v(vRa)}, {WS}, {s(sHD)} offen offset:512 sc1
        buffer_store_dwordx2 {v(RES+8,2)}, {v(vRc)}, {WS}, {s(sHD)} offen offset:1024 sc1
        s_add_u32 {s(sHD)}, {s(sHD)}, {TILE}""")
        self.stamp(3)
        k("s_waitcnt vmcnt(0)")
        k.many(self.put_flag(T))
        k("L_Rnext:")
        self.stamp(4)
        self.stamps_out(5, T + 2)
        k(f"""s_add_u32 {s(sS)}, {s(sS)}, 1
        s_cmp_lt_u32 {s(sS)}, 64
        s_cbranch_scc1 L_Rseg
        s_endpgm""")
        self.flush_ool()

    def build(self):
        self.prologue()
        self.role_C()
        self.role_T()
        self.role_B()
        self.role_R()
        self.flush_ool()
        body = self.k.text()
        ref = open(f'/code/{NAME}.s.ref').read()
        head = ref[:ref.index('; Override launch')]
        return (head + "; Generated by gen/gen.py (persistent role-specialised kernel; one workgroup per CU).\n"
                "; @launch grid=(256,1,1) block=(256,1,1) lds=163840\n"
                '.amdgcn_target "amdgcn-amd-amdhsa--gfx950"\n.text\n'
                f".globl {NAME}_kernel\n.p2align 8\n.type {NAME}_kernel,@function\n{NAME}_kernel:\n" + body +
                f""".section .rodata,"a"
.p2align 6
.amdhsa_kernel {NAME}_kernel
  .amdhsa_next_free_vgpr 512
  .amdhsa_next_free_sgpr 102
  .amdhsa_accum_offset 256
  .amdhsa_group_segment_fixed_size 0
  .amdhsa_kernarg_size 104
  .amdhsa_user_sgpr_count 2
  .amdhsa_user_sgpr_kernarg_segment_ptr 1
  .amdhsa_system_sgpr_workgroup_id_x 1
  .amdhsa_float_denorm_mode_32 3
.end_amdhsa_kernel
""")


if __name__ == '__main__':
    o = Opt()
    out = f'/code/{NAME}.s'
    for arg in sys.argv[1:]:
        key, val = arg.split('=')
        if key == 'out':
            out = val
        else:
            setattr(o, key, type(getattr(o, key))(int(val)) if not isinstance(getattr(o, key), str) else val)
    g = Gen(o)
    txt = g.build()
    open(out, 'w').write(txt)
    print(out, len(txt), 'bytes', g.k.n_ins, 'instructions', g.k.n_nop, 'nops')
```

```python
import re

REG_RE = re.compile(r'^-?\|?(?:abs\()?([vas])(?:(\d+)|\[(\d+):(\d+)\])\)?\|?$')
SPECIAL = {'vcc': [('s', 'vcc')], 'vcc_lo': [('s', 'vcc')], 'vcc_hi': [('s', 'vcc')],
           'exec': [('s', 'exec')], 'exec_lo': [('s', 'exec')], 'exec_hi': [('s', 'exec')],
           'm0': [('s', 'm0')]}
TRANS = ('v_exp_f32', 'v_log_f32', 'v_rcp_f32', 'v_rsq_f32', 'v_sqrt_f32', 'v_sin_f32', 'v_cos_f32', 'v_rcp_iflag_f32')


def regs_of(tok):
    tok = tok.strip()
    if tok in SPECIAL:
        return list(SPECIAL[tok])
    m = REG_RE.match(tok)
    if not m:
        return []
    k = m.group(1)
    if m.group(2) is not None:
        return [(k, int(m.group(2)))]
    return [(k, i) for i in range(int(m.group(3)), int(m.group(4)) + 1)]


def split_ops(s):
    out, depth, cur = [], 0, ''
    for ch in s:
        if ch in '[(':
            depth += 1
        if ch in '])':
            depth -= 1
        if ch == ',' and depth == 0:
            out.append(cur.strip())
            cur = ''
        else:
            cur += ch
    if cur.strip():
        out.append(cur.strip())
    return out


class Ins:
    def __init__(self, text):
        self.text = text
        self.pre_nop = 0
        self.pre_vm = None
        self.pre_lg = None
        t = text.split(';')[0].strip()
        parts = t.split(None, 1)
        self.op = op = parts[0]
        ops = split_ops(parts[1]) if len(parts) > 1 else []
        mods = []
        if ops and not op.startswith('s_waitcnt') and not op.startswith('s_getreg'):
            last = ops[-1].split()
            ops[-1] = last[0]
            mods = last[1:]
        self.ops, self.mods = ops, mods
        R = [regs_of(o) for o in ops]
        self.r, self.w = [], []
        self.is_mfma = op.startswith('v_mfma') or op.startswith('v_smfmac')
        self.is_valu = op.startswith('v_') and not self.is_mfma
        self.is_ds = op.startswith('ds_')
        self.is_vm = op.startswith('buffer_') or op.startswith('global_')
        self.is_smem = op.startswith('s_load') or op.startswith('s_memtime') or op.startswith('s_memrealtime')
        self.is_branch = op.startswith('s_branch') or op.startswith('s_cbranch')
        self.is_dpp = op.endswith('_dpp')
        self.is_perm = op.startswith('v_permlane')
        self.is_rdlane = op.startswith('v_readlane') or op.startswith('v_readfirstlane')
        self.is_trans = any(op.startswith(x) for x in TRANS)
        self.is_dot = op.startswith('v_dot')
        self.is_dma = self.is_vm and 'lds' in mods
        self.load_dst = []
        self.srcA = self.srcB = self.srcC = []
        self.passes = 0
        self.wide_data = []
        flat = lambda L: [x for l in L for x in l]
        if self.is_mfma:
            self.w = R[0]
            self.srcA, self.srcB = R[1], R[2]
            if op.startswith('v_smfmac'):
                self.srcC = R[0]
                self.srcB = R[2] + R[3]
            else:
                self.srcC = R[3]
            self.r = self.srcA + self.srcB + self.srcC
            self.sgemm = op.endswith('_f32')
            if self.sgemm:
                assert '16x16x4' in op
                self.passes = 8
            else:
                self.passes = 8 if '32x32' in op else 4
        elif self.is_valu:
            if self.is_perm:
                self.w = R[0] + R[1]
                self.r = R[0] + R[1]
            elif op.startswith('v_nop'):
                pass
            else:
                assert '_co_' not in op and 'cmpx' not in op, op
                self.w = R[0]
                self.r = flat(R[1:])
                if op.startswith('v_fmac') or op.startswith('v_dot2c') or self.is_dpp or op.startswith('v_writelane'):
                    self.r += R[0]
        elif self.is_ds:
            if op.startswith('ds_read') or op.startswith('ds_bpermute') or op.startswith('ds_swizzle') or '_rtn_' in op:
                self.load_dst = R[0]
                self.w = R[0]
                self.r = flat(R[1:])
            else:
                self.r = flat(R)
        elif self.is_vm:
            if self.is_dma:
                self.r = flat(R) + [('s', 'm0')]
            elif '_load_' in op:
                self.load_dst = R[0]
                self.w = R[0]
                self.r = flat(R[1:])
            elif '_atomic_' in op:
                self.r = flat(R)
                if 'sc0' in mods:
                    self.load_dst = R[0]
                    self.w = R[0]
            elif '_store_' in op:
                self.r = flat(R)
                if 'dwordx4' in op or 'dwordx3' in op:
                    self.wide_data = R[0]
            else:
                self.r = flat(R)
        elif self.is_smem:
            self.load_dst = R[0]
            self.w = R[0]
            self.r = flat(R[1:])
        elif op == 'need':
            self.r = flat(R)
        elif op.startswith('s_'):
            if op.startswith('s_cmp') or op.startswith('s_bitcmp'):
                self.r = flat(R)
            elif self.is_branch:
                if 'vcc' in op:
                    self.r = [('s', 'vcc')]
            elif op in ('s_waitcnt', 's_nop', 's_barrier', 's_endpgm', 's_sleep', 's_setprio'):
                pass
            else:
                self.w = R[0] if R else []
                self.r = flat(R[1:])
                if op.startswith('s_addk') or op.startswith('s_mulk') or op.startswith('s_bitset'):
                    self.r += R[0]
                if 'saveexec' in op:
                    self.w = self.w + [('s', 'exec')]
        else:
            raise ValueError('unknown instruction: ' + text)
        for m in re.finditer(r'@w=(\w+)', text):
            self.load_dst = list(self.load_dst) + [('p', m.group(1))]
        for m in re.finditer(r'@r=(\w+)', text):
            self.r = list(self.r) + [('p', m.group(1))]
        if '@late' in text:
            self.load_dst = []
        if self.is_ds and not self.w:
            self.load_dst = list(self.load_dst) + [('p', 'ldsw')]
        if op == 's_barrier':
            self.r = list(self.r) + [('p', 'ldsw')]
        self.rs, self.ws = set(self.r), set(self.w)

    def states(self):
        if self.op == 's_nop':
            return int(self.ops[0], 0) + 1
        return 0 if self.op == 'need' else 1


class State:
    def __init__(self):
        self.haz, self.vm, self.lg, self.smem = {}, {}, {}, False

    def copy(self):
        s = State()
        s.haz, s.vm, s.lg, s.smem = dict(self.haz), dict(self.vm), dict(self.lg), self.smem
        return s

    def merge(self, o):
        ch = False
        for mine, other in ((self.haz, o.haz), (self.vm, o.vm), (self.lg, o.lg)):
            for k, v in other.items():
                if k not in mine or v < mine[k]:
                    mine[k] = v
                    ch = True
        if o.smem and not self.smem:
            self.smem = True
            ch = True
        return ch

    def age(self, n):
        self.haz = {k: v + n for k, v in self.haz.items() if v + n < 24}


def need(kind, reg, I):
    rd, wr = reg in I.rs, reg in I.ws
    if not (rd or wr) or I.op == 'need':
        return 0
    k = kind[0]
    if k == 'valu' or k == 'trans' or k == 'dot':
        n = 0
        if rd and I.is_mfma:
            n = 2
        if rd and (I.is_dpp or I.is_perm):
            n = 2
        if rd and I.is_rdlane:
            n = max(n, 1)
        if k == 'trans' and rd and (I.is_valu or I.is_vm or I.is_ds):
            n = max(n, 1)
        if k == 'dot':
            same_c = I.is_dot and I.op == kind[1] and reg not in set(regs_of(I.ops[1]) + regs_of(I.ops[2]))
            if not same_c:
                n = max(n, 3)
        return n
    if k == 'mfma':
        _, passes, sgemm, rng, op = kind
        if I.is_mfma:
            n = 0
            if reg in I.srcA or reg in I.srcB:
                n = passes + 2 if sgemm else passes + 4
            if reg in I.srcC:
                if tuple(I.srcC) == rng and I.op == op:
                    pass
                elif sgemm:
                    n = max(n, passes if I.sgemm else 0)
                else:
                    n = max(n, passes + 2)
            elif wr and I.passes != passes:
                n = max(n, passes + 4)
            return n
        return passes + 2 if sgemm else passes + 4
    if k == 'mfmaC':
        return kind[1] - 1 if (wr and I.is_valu) else 0
    if k == 'valu_s':
        if rd and I.is_vm:
            return 5
        if rd and I.is_rdlane:
            return 4
        if rd and (I.is_valu or I.is_mfma):
            return 2
        return 0
    if k == 'm0':
        return 1 if I.is_dma else 0
    if k == 'wstore':
        if wr:
            return 2 if I.is_valu else 1
        return 0
    return 0


class Asm:
    def __init__(self):
        self.items = []

    def __call__(self, text):
        for line in text.split('\n'):
            line = line.strip()
            if not line:
                continue
            if line.startswith(';'):
                self.items.append(('raw', '    ' + line))
            elif line.endswith(':'):
                self.items.append(('label', line[:-1]))
            elif line.startswith('.'):
                self.items.append(('raw', line))
            else:
                self.items.append(('ins', Ins(line)))

    def many(self, lines):
        for l in lines:
            self(l)

    def _pass(self, label_in):
        changed = False
        st = State()
        reach = True
        for kind, it in self.items:
            if kind == 'label':
                if it in label_in:
                    if reach:
                        st.merge(label_in[it])
                    else:
                        st = label_in[it].copy()
                elif not reach:
                    st = State()
                reach = True
                continue
            if kind != 'ins':
                continue
            I = it
            if I.op != 's_waitcnt':
                touched = I.rs | I.ws
                nv = min([st.vm[r] for r in (I.rs if I.is_vm else touched) if r in st.vm], default=None)
                nl = min([st.lg[r] for r in (I.rs if I.is_ds or I.is_smem else touched) if r in st.lg], default=None)
                if nl is not None and nl < 0:
                    nl = 0
                if nv is not None:
                    nv = min(nv, 63)
                    if I.pre_vm is None or nv < I.pre_vm:
                        I.pre_vm = nv
                        changed = True
                if nl is not None:
                    nl = min(nl, 15)
                    if I.pre_lg is None or nl < I.pre_lg:
                        I.pre_lg = nl
                        changed = True
                wv, wl = I.pre_vm, I.pre_lg
                if wv is not None or wl is not None:
                    st.age(1)
            else:
                m = re.search(r'vmcnt\((\d+)\)', I.text)
                wv = int(m.group(1)) if m else None
                m = re.search(r'lgkmcnt\((\d+)\)', I.text)
                wl = int(m.group(1)) if m else None
            if wv is not None:
                st.vm = {r: n for r, n in st.vm.items() if n < wv}
            if wl is not None:
                if wl == 0:
                    st.lg = {}
                else:
                    st.lg = {r: n for r, n in st.lg.items() if n < wl}
            req = 0
            for (reg, hk), age in st.haz.items():
                n = need(hk, reg, I) - age
                if n > req:
                    req = n
            if req > I.pre_nop:
                I.pre_nop = req
                changed = True
            st.age(I.pre_nop + I.states())
            if I.ws:
                st.haz = {k: v for k, v in st.haz.items() if not (k[0] in I.ws and k[1][0] in ('valu', 'trans', 'dot', 'valu_s', 'm0'))}
            if I.is_mfma:
                st.haz = {k: v for k, v in st.haz.items() if not (k[0] in I.ws and k[1][0] == 'mfma')}
                for r in I.w:
                    st.haz[(r, ('mfma', I.passes, I.sgemm, tuple(I.w), I.op))] = 0
                if not I.sgemm:
                    for r in I.srcC:
                        st.haz[(r, ('mfmaC', I.passes))] = 0
            elif I.is_valu:
                for r in I.w:
                    if r[0] == 's':
                        st.haz[(r, ('valu_s',))] = 0
                    elif I.is_trans:
                        st.haz[(r, ('trans',))] = 0
                    elif I.is_dot:
                        st.haz[(r, ('dot', I.op))] = 0
                    else:
                        st.haz[(r, ('valu',))] = 0
            elif ('s', 'm0') in I.ws:
                st.haz[(('s', 'm0'), ('m0',))] = 0
            for r in I.wide_data:
                st.haz[(r, ('wstore',))] = 0
            if I.is_vm:
                st.vm = {r: n + 1 for r, n in st.vm.items()}
                for r in I.load_dst:
                    st.vm[r] = 0
            if I.is_ds:
                st.lg = {r: n + 1 for r, n in st.lg.items()}
                for r in I.load_dst:
                    st.lg[r] = 0
            if I.is_smem:
                for r in I.load_dst:
                    st.lg[r] = -10 ** 6
            if I.is_branch:
                tgt = I.ops[0]
                if tgt not in label_in:
                    label_in[tgt] = st.copy()
                    changed = True
                elif label_in[tgt].merge(st):
                    changed = True
                if I.op == 's_branch':
                    reach = False
            if I.op == 's_endpgm':
                reach = False
        return changed

    def text(self):
        label_in = {}
        n = 0
        while self._pass(label_in):
            n += 1
            assert n < 50
        out = []
        self.n_nop = self.n_ins = 0
        for kind, it in self.items:
            if kind == 'raw':
                out.append(it)
            elif kind == 'label':
                out.append(it + ':')
            else:
                w = []
                if it.pre_vm is not None:
                    w.append('vmcnt(%d)' % it.pre_vm)
                if it.pre_lg is not None:
                    w.append('lgkmcnt(%d)' % it.pre_lg)
                if w:
                    out.append('    s_waitcnt ' + ' '.join(w))
                p = it.pre_nop
                while p > 0:
                    q = min(p, 16)
                    out.append('    s_nop %d' % (q - 1))
                    p -= q
                    self.n_nop += 1
                if it.op != 'need':
                    out.append('    ' + it.text.split(';@')[0].rstrip())
                    self.n_ins += 1
        return '\n'.join(out) + '\n'


def v(n, c=1):
    return 'v%d' % n if c == 1 else 'v[%d:%d]' % (n, n + c - 1)


def a(n, c=1):
    return 'a%d' % n if c == 1 else 'a[%d:%d]' % (n, n + c - 1)


def s(n, c=1):
    return 's%d' % n if c == 1 else 's[%d:%d]' % (n, n + c - 1)


class Alloc:
    def __init__(self, start, limit):
        self.n, self.limit = start, limit

    def __call__(self, cnt=1, align=None):
        if align is None:
            align = 1 if cnt == 1 else 2
        self.n = (self.n + align - 1) // align * align
        r = self.n
        self.n += cnt
        assert self.n <= self.limit, 'out of registers'
        return r


def weave(main, extra, start=0, every=1):
    out, j = [], 0
    for i, l in enumerate(main):
        out.append(l)
        if i >= start and (i - start) % every == 0 and j < len(extra):
            e = extra[j]
            out.extend(e if isinstance(e, (list, tuple)) else [e])
            j += 1
    for e in extra[j:]:
        out.extend(e if isinstance(e, (list, tuple)) else [e])
    return out


class Slots:
    def __init__(self):
        self.t = self.mfma = self.valu = self.mem = 0
        self.hist = []

    def copy(self):
        c = Slots()
        c.t, c.mfma, c.valu, c.mem, c.hist = self.t, self.mfma, self.valu, self.mem, list(self.hist)
        return c

    def pads(self, I):
        n = 0
        for P, age in self.hist:
            if P.is_mfma:
                ev = [(r, ('mfma', P.passes, P.sgemm, tuple(P.w), P.op)) for r in P.w] + [(r, ('mfmaC', P.passes)) for r in P.srcC]
            elif P.is_valu:
                ev = [(r, ('valu_s',) if r[0] == 's' else ('trans',) if P.is_trans else ('valu',)) for r in P.w]
            else:
                ev = [(r, ('wstore',)) for r in P.wide_data] + ([(('s', 'm0'), ('m0',))] if ('s', 'm0') in P.ws else [])
            for r, kind in ev:
                n = max(n, need(kind, r, I) - age)
        return n

    def put(self, line):
        line = line.strip()
        if line.endswith(':') or line.startswith(';'):
            return
        I = Ins(line)
        p = self.pads(I)
        self.t += p
        if I.is_mfma:
            st = max(self.t, self.mfma)
            self.mfma, self.mem = st + I.passes, st + 2
            self.valu = st + (3 if I.op.startswith('v_smf') else 2)
            self.t = st + 1
        elif I.is_valu:
            st = max(self.t, self.valu, self.mfma if I.op.startswith('v_pk_') or I.is_dot else 0)
            self.t = st + (2 if I.is_trans or I.is_perm else 1)
        elif I.is_ds or I.is_vm:
            st = max(self.t, self.mem)
            self.t = st + 1
            nd = len([r for r in I.r if r[0] in 'va']) - 1
            if I.is_ds and not I.w:
                self.t += nd
            elif '_store_' in I.op:
                self.mfma = max(self.mfma, st + {0: 2, 1: 2, 2: 4, 4: 6}[nd])
        else:
            self.t += 2 if I.is_branch else I.states() if I.op == 's_nop' else 1
        p += max(1, I.states())
        self.hist = [(P, age + p) for P, age in self.hist if age + p < 12] + [(I, 0)]

    def next_mfma(self):
        return max(self.t, self.mfma)


def pack(k, ms, queues, ordered=False, fill=0):
    sim = Slots()

    filling = [False]

    def put(g):
        for x in (g if isinstance(g, (list, tuple)) else [g]):
            if filling[0] and x[:2] in ('v_', 'ds', 'bu'):
                idle = (sim.valu if x[0] == 'v' else sim.mem) - sim.t
                if idle > 0:
                    put(f"s_nop {idle - 1}")
            k(x)
            sim.put(x)
    scalar = lambda g: all(x.startswith('s_') for x in (g if isinstance(g, (list, tuple)) else [g]))
    for n, (m, wait, rider) in enumerate(ms):
        filling[0] = False
        put(m)
        filling[0] = fill > 0 and n + 1 + fill >= len(ms)
        later = set(r for x in ms[n+1:] for r in Ins(x[0]).w) if ordered else set()
        live = []
        for q in queues:
            if q and isinstance(q[0], int):
                q[0] -= 1
                if q[0] > 0:
                    continue
                q.pop(0)
            live.append(q)
        ready = lambda q: q and not isinstance(q[0], int)
        if wait:
            put(wait)
        else:
            for q in live:
                if ready(q) and isinstance(q[0], str) and scalar(q[0]):
                    put(q.pop(0))
                    break
        if rider:
            put(rider)
        empty = not rider
        again = True
        while again:
            again = False
            for q in live:
                if not ready(q):
                    continue
                g = q[0] if isinstance(q[0], (list, tuple)) else [q[0]]
                if later and any(Ins(x).rs & later for x in g):
                    continue
                t = sim.copy()
                for x in g:
                    t.put(x)
                alone = Slots()
                for x in [m] + list(g):
                    alone.put(x)
                never = alone.next_mfma() > 4 and not sim.pads(Ins([x for x in g if not x.endswith(':')][0]))
                if t.next_mfma() <= sim.next_mfma() or (never and empty):
                    put(q.pop(0))
                    empty, again = False, True
                    break
        first = lambda g: [x for x in (g if isinstance(g, (list, tuple)) else [g]) if not x.endswith(':')][0]
        short = any(ready(q) and not (Ins(first(q[0])).rs & later) and sim.pads(Ins(first(q[0]))) for q in live)
        if n + 1 < len(ms) and (short or n + 1 + fill >= len(ms)) and sim.next_mfma() > sim.t:
            put(f"s_nop {sim.next_mfma() - sim.t - 1}")
```

```python
import sys, os, math, struct
from asmdsl import *

NAME = 'interleave_layers__memory_aug_recurrent_mem_tr__sliding_local_dilated__prompt'
MB = 1 << 20
RING, FLAGS, DBG, X3R = 0, 8 * MB, 9 * MB, 14 * MB
HA, HB, X1B, X2B = 16 * MB, 32 * MB, 48 * MB, 54 * MB
OX, PA, PB = 58 * MB, 72 * MB, 136 * MB
HSEG, OXL, PART = 128 * 1024, 16 * 8 * 49152, 5 * 16384
FFAR = X3R + 0x20000
XSZ = 2048 * 1280
TILE = 32 * 1280
SLOT = 256 * 1024
R_X1M, R_X1X, R_X2, R_AG, R_X3 = 0, 30720, 153600, 178176, 188416
OOB = 0x80000000


def f2u(x):
    return '0x%08x' % struct.unpack('<I', struct.pack('<f', x))[0]


class Opt:
    stamps = 0
    roles = 'CTBR'
    layers = 2
    fsleep = 2
    warm = 0
    nt = 1
    carr = 4
    gpos = 7
    nv0, nv2, nm0, sxx = 1, 4, 4, 0
    nox = 0
    ad3, adn, rest0, d3 = 1, 0, 0, 0
    agm, x2m = 2, 0
    hm = 0
    fine, b5, n1d, dsp, x1p = 1, 1, 1, 2, 0
    aga, agd, x1a, x1d, x3a, x3d = 2, 6, 1, 4, 2, 13
    cut = ''
    free = 0
    sel = '0,1,2,3,4,5,6,7,8,9,10,11,12'
    severy = 1
    tflag, tf1, tsamp, tpre, tgap = 8, 11, 15, 19, 0
    bsamp, bpre, bw0, bi0 = 2, 10, 11, 6
    dpos = '340003'
    nv1, n1a, n1b, n1c, x2i, x2e, x2g, n2a, n2b, n3a, n3b, n3c, n3d, n3e, n4, n5, n6, fgap, xpub = 6, 6, 21, 1, 13, 2, 2, 25, 2, 4, 4, 9, 14, 14, 12, 0, 0, 8, 4
    nowait = 0
    oxr = 8


S_WS, S_DBG, S_A, S_B, S_C, S_D, S_E = 4, 8, 12, 16, 20, 24, 28
P0 = 32
P_X, P_MEM0, P_WQ, P_WK, P_WV, P_WO, P_WQKV, P_BWO, P_OUT, P_DBG, P_WS = (P0 + 2 * i for i in (0, 1, 2, 3, 4, 5, 8, 9, 10, 11, 12))
sX, sT, sW, sTO, sS, sFLAG, sT0, sT1, sT2, sT3, sL, sHG = range(58, 70)
sFLOC, sPAR = 3, 1
S_FREE = 70
WS, DBGS = s(S_WS, 4), s(S_DBG, 4)


def srd(k, dst, ptr, nbytes):
    k(f"""s_mov_b32 {s(dst)}, {s(ptr)}
    s_mov_b32 {s(dst+1)}, {s(ptr+1)}
    s_mov_b32 {s(dst+2)}, {nbytes}
    s_mov_b32 {s(dst+3)}, 0x20000""")


class Gen:
    def __init__(self, opt):
        self.o = opt
        self.k = Asm()
        self.ool = []
        self.nlab = 0

    def lab(self, p):
        self.nlab += 1
        return f'L{p}_{self.nlab}'

    def bad_tag(self, r, tmp, tag):
        c = [f"v_bitop3_b32 {v(tmp)}, {v(r[0])}, {v(r[1])}, {s(tag)} bitop3:0x7e"]
        if len(r) == 4:
            c += [f"v_bitop3_b32 {v(tmp+1)}, {v(r[2])}, {v(r[3])}, {s(tag)} bitop3:0x7e",
                  f"v_bitop3_b32 {v(tmp)}, {v(tmp)}, {v(tmp+1)}, 1 bitop3:0xa8"]
        else:
            c += [f"v_bitop3_b32 {v(tmp)}, {v(tmp)}, {v(r[2])}, {s(tag)} bitop3:0xf6",
                  f"v_and_b32 {v(tmp)}, {v(self.vTagM)}, {v(tmp)}"]
        return c + [f"v_cmp_eq_u32 vcc, {2 if self.o.free else 1}, {v(tmp)}"]

    def bad_empty(self, regs, tmp):
        regs = list(regs)
        c = [f"v_max3_u32 {v(tmp)}, {v(regs[0])}, {v(regs[1])}, {v(regs[2])}"]
        rest = regs[3:]
        while len(rest) >= 2:
            c.append(f"v_max3_u32 {v(tmp)}, {v(tmp)}, {v(rest[0])}, {v(rest[1])}")
            rest = rest[2:]
        if rest:
            c.append(f"v_max_u32 {v(tmp)}, {v(tmp)}, {v(rest[0])}")
        return c + [f"v_cmp_{'lt' if self.o.free else 'eq'}_u32 vcc, -1, {v(tmp)}"]

    def poll(self, sets, ld, bad, use, code, early=False):
        ok, n = self.lab('ok'), len(sets)
        rty = [self.lab('rty') for _ in sets]
        chk = lambda i: bad(sets[i]) + [f"s_cbranch_vccnz {rty[i]}"]
        self.k.many((use(sets[0]) + chk(0) if early else chk(0) + use(sets[0])) + [ok + ':'])
        for i in range(n):
            j = (i + 1) % n
            self.ool.append([rty[i] + ':'] + ld(sets[i]) + self.timeout(code) + chk(j) + use(sets[j]) + [f's_branch {ok}'])

    def poll_lanes(self, loads, tmp, lim, masks, use, code, early=False):
        ok, rty = self.lab('ok'), self.lab('rty')
        allr = [r for _, rs in loads for r in rs]
        first = self.bad_empty(allr, tmp)[:-1] + [f"v_cmp_lt_u32 vcc, {lim}, {v(tmp)}", f"s_cbranch_vccnz {rty}"]
        self.k.many((use + first if early else first + use) + [ok + ':'])
        test = []
        for i, (_, rs) in enumerate(loads):
            if len(rs) > 1:
                test.append(f"v_max_u32 {v(tmp)}, {v(rs[0])}, {v(rs[1])}")
            test.append(f"v_cmp_lt_u32 {s(masks+2*i,2)}, {lim}, {v(tmp if len(rs) > 1 else rs[0])}")
        again = [x for i, (l, _) in enumerate(loads) for x in (f"s_mov_b64 exec, {s(masks+2*i,2)}", l)] + ["s_mov_b64 exec, -1"]
        self.ool.append([rty + ':'] + test + again + self.timeout(code) + ["s_waitcnt vmcnt(0)"] + first + use + [f"s_branch {ok}"])

    def timeout(self, code):
        return [f"s_sub_u32 {s(sTO)}, {s(sTO)}, 1", f"s_mov_b32 {s(sT3)}, {code}", f"s_cbranch_scc1 L_fail"]

    def check_flags(self, reg, want, reissue, code, notready=None):
        k = self.k
        chk, rty = self.lab('fchk'), self.lab('frty')
        k(f"{chk}:\nv_cmp_gt_u32 vcc, {s(want)}, {v(reg)}")
        if notready:
            k(f"s_cbranch_vccnz {notready}")
        else:
            k(f"s_cbranch_vccnz {rty}")
            self.ool.append([rty + ':', f's_sleep {self.o.fsleep}'] + list(reissue) + self.timeout(code) + ['s_waitcnt vmcnt(0)', f's_branch {chk}'])

    def flag_lines(self, dst, tmp, own_layer, ticket, mask):
        k = self.k
        k(f"""v_and_b32 {v(dst)}, {mask}, v0
        v_mov_b32 {v(tmp)}, {ticket}
        v_lshl_add_u32 {v(dst)}, {v(tmp)}, 2, {v(dst)}
        v_lshlrev_b32 {v(dst)}, 7, {v(dst)}
        v_bfe_u32 {v(tmp)}, v0, 4, 2
        v_cmp_eq_u32 vcc, {s(sHG)}, {v(tmp)}
        s_xor_b32 {s(sT0)}, {s(sPAR)}, 0x2000
        s_add_u32 {s(sT0)}, {s(sT0)}, {FFAR-24*512}
        v_lshl_add_u32 {v(tmp)}, {v(tmp)}, 18, {s(sT0)}""")
        if own_layer:
            k(f"""s_lshl_b32 {s(sT0)}, {s(sL)}, 20
            v_add_u32 {v(tmp)}, {s(sT0)}, {v(tmp)}
            s_lshl_b32 {s(sT0)}, {s(sX)}, 14
            s_add_u32 {s(sT0)}, {s(sT0)}, {FLAGS}
            v_mov_b32 v2, {s(sT0)}
            v_cndmask_b32 {v(tmp)}, {v(tmp)}, v2, vcc""")
        k(f"v_add_u32 {v(dst)}, {v(dst)}, {v(tmp)}")

    def take_par(self, r):
        self.k(f"""v_readfirstlane_b32 {s(sPAR)}, {v(r)}
        s_cmp_gt_u32 {s(sPAR)}, 17
        s_cselect_b32 {s(sPAR)}, 1, 0
        s_xor_b32 {s(sPAR)}, {s(sPAR)}, {s(sL)}
        s_lshl_b32 {s(sPAR)}, {s(sPAR)}, 13""")

    def get_par(self, flip=None):
        k = self.k
        chk, rty = self.lab('pchk'), self.lab('prty')
        ld = f"buffer_load_dword v2, off, {DBGS}, 0 offset:{self.D_PAR} sc1"
        k(f"{ld}\n{chk}:\nv_cmp_eq_u32 vcc, 0, v2\ns_cbranch_vccnz {rty}")
        self.ool.append([rty + ':', 's_sleep 16', ld] + self.timeout(16) + [f's_branch {chk}'])
        self.take_par(2)
        k(f"""s_lshl_b32 {s(sFLAG)}, {s(sX)}, 18
        s_and_b32 {s(sT0)}, {s(sFLOC)}, 0xfff
        s_add_u32 {s(sFLAG)}, {s(sFLAG)}, {s(sT0)}
        s_add_u32 {s(sFLAG)}, {s(sFLAG)}, {FFAR+0x2000}
        s_xor_b32 {s(sFLAG)}, {s(sFLAG)}, {s(sPAR)}""")
        if flip is not None:
            k(f"s_xor_b32 {s(sFLAG)}, {s(sFLAG)}, {s(flip)}")

    def near(self, dst, base, par=sPAR, mask='0x2000'):
        return [f"s_lshr_b32 {s(dst)}, {s(base)}, 8", f"s_xor_b32 {s(dst)}, {s(dst)}, {s(par)}", f"s_and_b32 {s(dst)}, {s(dst)}, {mask}",
                f"s_or_b32 {s(dst)}, {s(dst)}, {s(base)}"]

    def tile_kb(self, n, t):
        return f"v_lshrrev_b32 {v(t)}, 3, {v(n)}\nv_lshlrev_b32 {v(n)}, 10, {v(n)}\nv_lshl_add_u32 {v(n)}, {v(t)}, 13, {v(n)}"

    def flush_ool(self):
        for b in self.ool:
            self.k.many(b)
        self.ool = []

    def barrier(self):
        self.k("s_waitcnt lgkmcnt(0)\ns_barrier")

    def layernorm(self, pk, f, t, n=10, dst=None):
        k = self.k
        for i in range(n):
            k(f"v_lshlrev_b32 {v(f+2*i)}, 16, {v(pk+i)}\nv_and_b32 {v(f+2*i+1)}, 0xffff0000, {v(pk+i)}")
        k(f"v_pk_add_f32 {v(t,2)}, {v(f,2)}, {v(f+2,2)}")
        for i in range(2, n):
            k(f"v_pk_add_f32 {v(t,2)}, {v(t,2)}, {v(f+2*i,2)}")
        self.rowsum(t, n)
        k(f"v_mul_f32 {v(t)}, {f2u(-1/640)}, {v(t)}")
        for i in range(n):
            k(f"v_pk_add_f32 {v(f+2*i,2)}, {v(f+2*i,2)}, {v(t,2)} op_sel_hi:[1,0]")
        k(f"v_pk_mul_f32 {v(t,2)}, {v(f,2)}, {v(f,2)}")
        for i in range(1, n):
            k(f"v_pk_fma_f32 {v(t,2)}, {v(f+2*i,2)}, {v(f+2*i,2)}, {v(t,2)}")
        self.rowsum(t, n)
        k(f"""v_mov_b32 {v(t+1)}, {f2u(1e-5)}
        v_fmac_f32 {v(t+1)}, {f2u(1/640)}, {v(t)}
        v_rsq_f32 {v(t)}, {v(t+1)}""")
        for i in range(n):
            k(f"v_pk_mul_f32 {v(f+2*i,2)}, {v(f+2*i,2)}, {v(t,2)} op_sel_hi:[1,0]")
        for i in range(n):
            k(f"v_cvt_pk_bf16_f32 {v((dst or pk)+i)}, {v(f+2*i)}, {v(f+2*i+1)}")

    def rowsum(self, x, n):
        k, t = self.k, x + 1
        k(f"v_add_f32 {v(x)}, {v(x)}, {v(t)}")
        for m in ('quad_perm:[1,0,3,2]', 'quad_perm:[2,3,0,1]', 'row_half_mirror', 'row_mirror'):
            k(f"v_add_f32_dpp {v(x)}, {v(x)}, {v(x)} {m} row_mask:0xf bank_mask:0xf")
        for w in (16, 32)[:1 if n == 10 else 2]:
            k(f"v_mov_b32 {v(t)}, {v(x)}\nv_permlane{w}_swap_b32 {v(x)}, {v(t)}\nv_add_f32 {v(x)}, {v(x)}, {v(t)}")

    D_ARR, D_LOAD, D_VOTE, D_FAIL, D_GO, D_HALF, D_PAR = 4, 68, 72, 40, 132, 136, 140

    def count(self, ctr, marks, wave=0, r=2, part=3):
        k = self.k
        skip = self.lab('cnt')
        k(f"""s_cmp_lg_u32 {s(sW)}, {wave}
        s_cbranch_scc1 {skip}
        s_mov_b64 exec, 1""")
        if part & 1:
            k(f"v_mov_b32 {v(r)}, 1\nbuffer_atomic_add {v(r)}, off, {DBGS}, 0 offset:{ctr} sc0")
        if part & 2:
            k(f"v_mov_b32 {v(r+1)}, {OOB:#x}")
            for n, word in marks:
                k(f"v_cmp_ne_u32 vcc, {n-1}, {v(r)}\nv_cndmask_b32 {v(r+1)}, {word-128}, {v(r+1)}, vcc")
            k(f"buffer_store_dword {v(r)}, {v(r+1)}, {DBGS}, 0 offen offset:128 sc1")
        k(f"s_mov_b64 exec, -1\n{skip}:")

    def await_word(self, word, code, sleep=16):
        k = self.k
        chk, rty, skip = self.lab('gchk'), self.lab('grty'), self.lab('gskip')
        ld = f"buffer_load_dword v2, off, {DBGS}, 0 offset:{word} sc1"
        k(f"""s_cmp_lg_u32 {s(sW)}, 0
        s_cbranch_scc1 {skip}
        {ld}
        {chk}:
        v_cmp_eq_u32 vcc, 0, v2
        s_cbranch_vccnz {rty}
        {skip}:""")
        self.barrier()
        self.ool.append([rty + ':', f's_sleep {sleep}', ld] + self.timeout(code) + [f's_branch {chk}'])

    def arrive(self, younger=0, r=2, part=3):
        if part & 1:
            self.k(f"s_waitcnt vmcnt({younger})\ns_barrier")
        self.count(self.D_ARR, [(256, self.D_GO)], 0, r, part)

    def wait_grid(self):
        self.await_word(self.D_GO, 1)

    def hold(self):
        self.await_word(self.D_HALF, 4)

    def warm(self):
        k = self.k
        skip = self.lab('nowarm')
        k(f"""s_cmp_eq_u32 {s(sL)}, 0
        s_cbranch_scc1 {skip}""")
        if self.o.warm:
            k(f"""s_lshl_b32 {s(sT0)}, {s(sHG)}, 5
            s_add_u32 {s(sT0)}, {s(sT0)}, {s(sT)}
            s_lshl_b32 {s(sT0)}, {s(sT0)}, 12
            v_lshl_add_u32 v3, v0, 4, {s(sT0)}""")
            for ptr, size in ((P_WQ, 640 * 12288), (P_WK, 640 * 12288), (P_WV, 640 * 12288), (P_WO, 6144 * 1280), (P_WQKV, 640 * 3840), (P_BWO, 640 * 1280)):
                lp = self.lab('warm')
                srd(k, S_E, ptr, size)
                k(f"""s_mov_b32 {s(sT0)}, 0
                {lp}:
                buffer_load_dwordx4 a[252:255], v3, {s(S_E,4)}, {s(sT0)} offen
                s_add_u32 {s(sT0)}, {s(sT0)}, {128*4096}
                s_cmp_lt_u32 {s(sT0)}, {size}
                s_cbranch_scc1 {lp}""")
                if ptr == P_WQ:
                    self.arrive(15)
            k("s_waitcnt vmcnt(0)")
        else:
            self.arrive(0)
            self.probe()
            self.hold()
        k(skip + ':')

    def arrive0(self, younger, part=3):
        skip = self.lab('arr0')
        self.k(f"s_cmp_lg_u32 {s(sL)}, 0\ns_cbranch_scc1 {skip}")
        self.arrive(younger, 2, part)
        self.k(skip + ':')

    def loaded(self, r=2, part=3):
        self.count(self.D_LOAD, [(96, self.D_HALF)], 1, r, part)

    def probe(self):
        k = self.k
        lp, end = self.lab('probe'), self.lab('noprobe')
        m0, m1 = S_FREE, S_FREE + 1
        k(f"""s_lshl_b32 {s(sT0)}, {s(sW)}, 5
        s_add_u32 {s(sT0)}, {s(sT0)}, {s(sT)}
        s_lshr_b32 {s(sT0)}, {s(sT0)}, 3
        s_cmp_lg_u32 {s(sT0)}, 3
        s_cbranch_scc1 {end}
        s_lshl_b32 {s(sT0)}, {s(sHG)}, 3
        s_and_b32 {s(sT1)}, {s(sT)}, 7
        s_add_u32 {s(sT0)}, {s(sT0)}, {s(sT1)}
        s_lshl_b32 {s(sT0)}, {s(sT0)}, 7
        s_add_u32 {s(sT0)}, {s(sT0)}, {X3R+0x2c000}
        s_add_u32 {s(sT2)}, {s(sT0)}, {2*0x10000}
        v_lshlrev_b32 v3, 4, v0
        s_mov_b64 exec, 0xff
        s_mov_b32 {s(m0)}, -1
        s_mov_b32 {s(m1)}, -1
        {lp}:
        buffer_store_dwordx4 v[8:11], v3, {WS}, {s(sT0)} offen sc1
        s_mov_b32 s0, 0
        {lp}w:
        s_add_u32 s0, s0, 1
        s_sub_u32 {s(sTO)}, {s(sTO)}, 1
        s_cbranch_scc1 L_fail
        s_getreg_b32 {s(sT1)}, hwreg(HW_REG_IB_STS, 0, 4)
        s_cmp_lg_u32 {s(sT1)}, 0
        s_cbranch_scc1 {lp}w
        s_waitcnt vmcnt(0)
        s_bitcmp1_b32 {s(sT0)}, 13
        s_cselect_b32 {s(sT1)}, -1, s0
        s_cselect_b32 s0, s0, -1
        s_min_u32 {s(m0)}, {s(m0)}, {s(sT1)}
        s_min_u32 {s(m1)}, {s(m1)}, s0
        s_add_u32 {s(sT0)}, {s(sT0)}, 0x1000
        s_or_b32 {s(sT0)}, {s(sT0)}, 0xc000
        s_cmp_lt_u32 {s(sT0)}, {s(sT2)}
        s_cbranch_scc1 {lp}
        s_cmp_gt_u32 {s(m0)}, {s(m1)}
        s_cselect_b32 {s(sT1)}, 65, 64
        s_mov_b64 exec, 1
        v_mov_b32 v2, {s(sT1)}
        buffer_atomic_add v2, off, {DBGS}, 0 offset:{self.D_VOTE} sc0
        v_add_u32 v2, {s(sT1)}, v2
        v_subrev_u32 v2, {32*64-1}, v2
        v_mov_b32 v3, {OOB:#x}
        v_cmp_lt_i32 vcc, 0, v2
        v_cndmask_b32 v3, v3, 0, vcc
        buffer_store_dword v2, v3, {DBGS}, 0 offen offset:{self.D_PAR} sc1
        s_mov_b64 exec, -1
        {end}:""")

    def put_flag(self, tmp, val, far=True):
        return [f"v_mov_b32 {v(tmp)}, {val}", "s_mov_b64 exec, 1"] + \
            ([f"buffer_store_dword {v(tmp)}, off, {WS}, {s(sFLAG)} sc1"] if far else []) + \
            [f"buffer_store_dword {v(tmp)}, off, {WS}, {s(sFLOC)}"] + self.trace(tmp, val) + ["s_mov_b64 exec, -1"]

    def tp(self, i, tmp=2):
        if self.o.stamps != 7:
            return
        self.k(f"s_memtime {s(32+2*i,2)}")
        if i == 7:
            self.k.many([f"s_sub_u32 s50, {s(sFLOC)}, {FLAGS}", "s_lshl_b32 s50, s50, 5", f"s_lshl_b32 s51, {s(sS)}, 5", "s_add_u32 s50, s50, s51",
                         f"s_add_u32 s50, s50, {DBG}"] + [f"v_writelane_b32 {v(tmp)}, {s(32+2*j)}, {j}" for j in range(8)] +
                        [f"s_mov_b32 {s(32+2*j)}, 0" for j in range(8)] +
                        ["v_mbcnt_lo_u32_b32 v0, -1, 0", "v_lshlrev_b32 v0, 2, v0", "s_mov_b64 exec, 0xff",
                         f"buffer_store_dword {v(tmp)}, v0, {WS}, s50 offen", "s_mov_b64 exec, -1"])

    def trace(self, tmp, val):
        if self.o.stamps != 6:
            return []
        return [f"v_mov_b32 {v(tmp)}, s32", f"s_and_b32 s35, s35, 0x3fc", f"s_sub_u32 s34, {s(sFLOC)}, {FLAGS}", "s_lshl_b32 s34, s34, 3",
                "s_add_u32 s34, s34, s35", f"s_add_u32 s34, s34, {DBG}", f"buffer_store_dword {v(tmp)}, off, {WS}, s34",
                "s_memrealtime s[32:33] ;@late", f"s_lshl_b32 s35, {val}, 2"]

    def adv(self, reg, stride, segreg_add=1):
        return [f"s_add_u32 {s(reg)}, {s(reg)}, {stride}",
                f"s_add_u32 {s(sT2)}, {s(sS)}, {segreg_add}", f"s_and_b32 {s(sT2)}, {s(sT2)}, {self.o.oxr-1}",
                f"s_cselect_b32 {s(sT2)}, 0, {stride*self.o.oxr}", f"s_sub_u32 {s(reg)}, {s(reg)}, {s(sT2)}"]

    def stamp(self, i):
        sel = [int(x) for x in self.o.sel.split(',')]
        if self.o.stamps in (1, 2) and i in sel:
            self.k(f"{'s_memrealtime' if self.o.stamps == 2 else 's_memtime'} {s(self.sST+2*sel.index(i), 2)}")

    def pstamp(self, i):
        if self.o.stamps == 4:
            if i in (10, 11):
                self.pstamp(i + 2)
            self.k(f"""{'s_memtime' if i in (12, 13) else 's_memrealtime'} vcc
            v_lshrrev_b32 v3, 6, v0
            v_lshlrev_b32 v3, 8, v3
            s_waitcnt lgkmcnt(0)
            v_mov_b32 v2, vcc_lo
            s_lshl_b32 vcc_lo, s2, 10
            s_add_u32 vcc_lo, vcc_lo, {DBG}
            s_mov_b64 exec, 1
            buffer_store_dword v2, v3, {WS}, vcc_lo offen offset:{4*i}
            s_mov_b64 exec, -1""")

    def stamps_out(self, n, tmp, half=False):
        if self.o.stamps in (0, 4, 6, 7):
            return
        k = self.k
        if self.o.stamps == 3:
            k(f"s_memtime {s(self.sST, 2)}\ns_memrealtime {s(self.sST+2, 2)}")
            n = 2
        skip = self.lab('nost')
        k(f"""s_lshr_b32 {s(sT3)}, {s(sS)}, {int(half)}
        s_and_b32 {s(sT0)}, {s(sT3)}, {self.o.severy-1}
        s_cbranch_scc1 {skip}
        s_waitcnt lgkmcnt(0)
        s_lshl_b32 {s(sT0)}, {s(sX)}, 5
        s_add_u32 {s(sT0)}, {s(sT0)}, {s(sT)}
        s_lshl_b32 {s(sT0)}, {s(sT0)}, 2
        s_add_u32 {s(sT0)}, {s(sT0)}, {s(sW)}
        s_lshl_b32 {s(sT0)}, {s(sT0)}, 6
        s_add_u32 {s(sT0)}, {s(sT0)}, {s(sT3)}
        s_lshl_b32 {s(sT0)}, {s(sT0)}, 6
        s_add_u32 {s(sT0)}, {s(sT0)}, {DBG}
        v_mov_b32 {v(tmp)}, 0""")
        for i in range(n):
            k(f"v_writelane_b32 {v(tmp)}, {s(self.sST+2*i)}, {i}")
        k(f"""v_mbcnt_lo_u32_b32 {v(tmp+1)}, -1, 0
        v_mbcnt_hi_u32_b32 {v(tmp+1)}, -1, {v(tmp+1)}
        v_lshlrev_b32 {v(tmp+1)}, 2, {v(tmp+1)}
        s_mov_b64 exec, 0xffff
        buffer_store_dword {v(tmp)}, {v(tmp+1)}, {WS}, {s(sT0)} offen
        s_mov_b64 exec, -1
        {skip}:""")

    def prologue(self):
        k = self.k
        k(f"""s_cmp_ge_u32 s2, 256
        s_cbranch_scc1 L_end
        s_load_dwordx16 s[32:47], s[0:1], 0
        s_load_dwordx8 s[48:55], s[0:1], 64
        s_load_dwordx2 s[56:57], s[0:1], 96
        s_getreg_b32 {s(sX)}, hwreg(HW_REG_XCC_ID)
        s_and_b32 {s(sX)}, {s(sX)}, 7
        v_lshrrev_b32 v1, 6, v0
        v_readfirstlane_b32 {s(sW)}, v1
        s_mov_b32 {s(sTO)}, 0x100000
        s_waitcnt lgkmcnt(0)""")
        srd(k, S_WS, P_WS, 256 * MB)
        srd(k, S_DBG, P_DBG, 256)
        srd(k, S_A, P_X, XSZ)
        self.pstamp(0)
        k(f"""s_cmp_lg_u32 {s(sW)}, 0
        s_cbranch_scc1 L_notick
        s_mov_b64 exec, 1
        v_mov_b32 v2, 1
        s_lshl_b32 {s(sT0)}, {s(sX)}, 5
        buffer_atomic_add v2, off, {DBGS}, {s(sT0)} sc0
        s_mov_b64 exec, -1
        L_notick:
        v_lshrrev_b32 v4, 5, v0
        s_lshl_b32 {s(sT0)}, s2, 3
        v_add_u32 v4, {s(sT0)}, v4
        v_mul_u32_u24 v4, 1280, v4
        v_and_b32 v5, 31, v0
        v_lshl_add_u32 v6, v5, 3, v4
        v_lshl_add_u32 v5, v5, 4, v4
        buffer_load_dwordx4 v[8:11], v5, {s(S_A,4)}, 0 offen
        buffer_load_dwordx4 v[12:15], v5, {s(S_A,4)}, 0 offen offset:512
        buffer_load_dwordx2 v[16:17], v6, {s(S_A,4)}, 0 offen offset:1024
        v_mov_b32 v44, -1
        v_mov_b32 v45, -1
        v_mov_b32 v46, -1
        v_mov_b32 v47, -1
        v_mov_b32 v48, 0
        v_lshlrev_b32 v7, 4, v0
        v_lshlrev_b32 v18, 2, v0
        s_lshr_b32 {s(sT0)}, s2, 5
        s_lshl_b32 {s(sT0)}, {s(sT0)}, 20
        s_bfe_u32 {s(sT1)}, s2, 0x10004
        s_lshl_b32 {s(sT1)}, {s(sT1)}, 18
        s_add_u32 {s(sT0)}, {s(sT0)}, {s(sT1)}
        s_and_b32 {s(sT1)}, s2, 15
        s_mul_i32 {s(sT1)}, {s(sT1)}, 11776
        s_add_u32 {s(sT0)}, {s(sT0)}, {s(sT1)}""")
        for i in range(3):
            k(f"buffer_store_dwordx4 v[44:47], v7, {WS}, {s(sT0)} offen sc1\ns_add_u32 {s(sT0)}, {s(sT0)}, 4096")
        k(f"""s_lshr_b32 {s(sT0)}, s2, 5
        s_lshl_b32 {s(sT0)}, {s(sT0)}, 18
        s_and_b32 {s(sT1)}, s2, 31
        s_lshl_b32 {s(sT1)}, {s(sT1)}, 12
        s_add_u32 {s(sT0)}, {s(sT0)}, {s(sT1)}
        s_add_u32 {s(sT0)}, {s(sT0)}, {X3R}
        buffer_store_dwordx4 v[44:47], v7, {WS}, {s(sT0)} offen sc1
        s_and_b32 {s(sT0)}, s2, 127
        s_lshl_b32 {s(sT0)}, {s(sT0)}, 10
        s_add_u32 {s(sT0)}, {s(sT0)}, {FLAGS}
        s_bfe_u32 {s(sT1)}, s2, 0x30004
        s_lshl_b32 {s(sT1)}, {s(sT1)}, 18
        s_and_b32 {s(sT2)}, s2, 15
        s_lshl_b32 {s(sT2)}, {s(sT2)}, 10
        s_add_u32 {s(sT1)}, {s(sT1)}, {s(sT2)}
        s_add_u32 {s(sT1)}, {s(sT1)}, {FFAR}
        s_cmp_lt_u32 s2, 128
        s_cselect_b32 {s(sT0)}, {s(sT0)}, {s(sT1)}
        buffer_store_dword v48, v18, {WS}, {s(sT0)} offen sc1
        v_bfe_u32 v49, v0, 5, 3
        s_and_b32 {s(sT0)}, s2, 3
        s_mul_i32 {s(sT0)}, {s(sT0)}, 10
        v_bfe_u32 v50, v0, 3, 2
        v_add_u32 v50, {s(sT0)}, v50
        v_add_u32 v51, 4, v50
        v_bfe_u32 v52, v0, 4, 1
        v_add3_u32 v52, v52, {s(sT0)}, 8
        {self.tile_kb(50, 53)}
        {self.tile_kb(51, 53)}
        {self.tile_kb(52, 53)}
        v_and_b32 v53, 7, v0
        v_xor_b32 v53, v53, v49
        v_lshlrev_b32 v53, 4, v53
        v_lshl_add_u32 v53, v49, 7, v53
        v_add_u32 v50, v50, v53
        v_add_u32 v51, v51, v53
        v_bfe_u32 v53, v0, 1, 3
        v_xor_b32 v53, v53, v49
        v_lshlrev_b32 v53, 4, v53
        v_lshl_add_u32 v53, v49, 7, v53
        v_and_b32 v54, 1, v0
        v_lshl_add_u32 v53, v54, 3, v53
        v_add_u32 v52, v52, v53""")
        k(f"""s_cmp_lg_u32 {s(sW)}, 0
        s_cbranch_scc1 L_notick2
        v_mov_b32 v3, 0
        s_mov_b64 exec, 1
        ds_write_b32 v3, v2
        s_mov_b64 exec, -1
        L_notick2:""")
        self.barrier()
        k(f"""v_mov_b32 v3, 0
        ds_read_b32 v2, v3
        v_readfirstlane_b32 {s(sT)}, v2""")
        self.barrier()
        self.pstamp(1)
        if self.o.stamps == 4:
            k(f"s_lshl_b32 {s(sT0)}, {s(sX)}, 5\ns_add_u32 {s(sT0)}, {s(sT0)}, {s(sT)}\nv_mov_b32 v2, {s(sT0)}\ns_mov_b64 exec, 1\n"
              f"buffer_store_dword v2, v3, {WS}, vcc_lo offen offset:60\ns_mov_b64 exec, -1")
        self.layernorm(8, 20, 40)
        k(f"""s_lshr_b32 {s(sT0)}, s2, 2
        s_lshl_b32 {s(sT0)}, {s(sT0)}, 17
        s_add_u32 {s(sT0)}, {s(sT0)}, {HA}
        buffer_store_dwordx4 v[8:11], v50, {WS}, {s(sT0)} offen sc1
        buffer_store_dwordx4 v[12:15], v51, {WS}, {s(sT0)} offen sc1
        buffer_store_dwordx2 v[16:17], v52, {WS}, {s(sT0)} offen sc1
        s_lshr_b32 {s(sL)}, {s(sX)}, 2
        s_and_b32 {s(sHG)}, {s(sX)}, 3
        s_lshl_b32 {s(sFLAG)}, {s(sX)}, 5
        s_add_u32 {s(sFLAG)}, {s(sFLAG)}, {s(sT)}
        s_lshl_b32 {s(sFLAG)}, {s(sFLAG)}, 2
        s_add_u32 {s(sFLAG)}, {s(sFLAG)}, {s(sW)}
        s_lshl_b32 {s(sFLAG)}, {s(sFLAG)}, 7
        s_add_u32 {s(sFLOC)}, {s(sFLAG)}, {FLAGS}
        s_mov_b32 {s(sS)}, 0""")
        self.warm()
        k(f"""s_cmp_lt_u32 {s(sT)}, 24
        s_cbranch_scc1 L_roleC
        s_cmp_lt_u32 {s(sT)}, 28
        s_cbranch_scc1 L_roleT
        s_cmp_lt_u32 {s(sT)}, 30
        s_cbranch_scc1 L_roleB
        s_cmp_lt_u32 {s(sT)}, 32
        s_cbranch_scc1 L_roleR
        s_mov_b32 {s(sT3)}, 2
        L_fail:
        s_mov_b64 exec, 1
        s_lshl_b32 {s(sT3)}, {s(sT3)}, 8
        s_add_u32 {s(sT3)}, {s(sT3)}, {s(sT)}
        s_lshl_b32 {s(sT3)}, {s(sT3)}, 8
        s_add_u32 {s(sT3)}, {s(sT3)}, {s(sX)}
        s_lshl_b32 {s(sT3)}, {s(sT3)}, 8
        s_add_u32 {s(sT3)}, {s(sT3)}, {s(sS)}
        v_mov_b32 v2, {s(sT3)}
        buffer_store_dword v2, off, {DBGS}, 0 offset:{self.D_FAIL}
        L_end:
        s_endpgm""")

    def role_gate(self, r):
        k = self.k
        def leave():
            self.arrive0(0)
            if r == 'C':
                self.loaded()
        if r not in self.o.roles:
            leave()
            k("s_endpgm")
            return False
        if self.o.layers == 1:
            go = self.lab('go')
            k(f"s_cmp_eq_u32 {s(sL)}, 0\ns_cbranch_scc1 {go}")
            leave()
            k(f"s_endpgm\n{go}:")
        return True

    def role_C(self):
        k = self.k
        o = self.o
        k("L_roleC:")
        self.pstamp(2)
        if not self.role_gate('C'):
            return
        MEM, QK, PX, WR, XQ, XT = 0, 12288, 14336, 18432, 22528, 32768
        V = Alloc(2, 256)
        S = Alloc(S_FREE, 102)
        vL = 1
        T2 = V(2, 2)
        WOV = V(80, 4)
        MF, FB, XA = V(40, 4), V(24, 4), V(24, 4)
        VA, VB, ONES, PM, MASK = (V(4, 4) for _ in range(5))
        SENT, self.vTagM = V(), V()
        vIDX = PM + 3
        A = V(26, 2)
        SUMM, vFa, SUMX, vMH = V(5, 2), V(), V(5, 2), V()
        (vXr0, vXr1, vT16, vT8, vL16, vL4, vL16x, vL4x, vL8, vQKw, vQKr, vXQw, vQXr, vPw8, vPw2, vO2, vO2l,
         vWRw, vAG, vX3, vFl) = (V() for _ in range(21))
        vOX = vXQw
        sC, sNEG, sSLOT, sXM0, sH, sOXB, cOWN, cP1, cP2, sOWN, sP1, sP2, sA0, sA1, sA2, sX2a, sX2b, sLIM, sX3, cX2, sPEND, sHb, sHn, sNM, sHD = (S() for _ in range(25))
        sR1, sHF, sG2 = S(2, 2), S(2, 2), S(2, 2)
        sTAG, sS2 = sR1 + 1, sNEG
        sMSK = 12
        self.sST = 32

        def WQ(ks, c=4): return a(4 * ks, c)
        def WK(ks, c=4): return a(80 + 4 * ks, c)
        def WV(ks, c=4): return a(160 + 4 * ks, c)
        def WO(n, c=8, off=0): return a(240 + 8 * n + off, c) if n < 2 else v(WOV + 8 * (n - 2) + off, c)

        srd(k, S_A, P_WQ, 640 * 12288)
        srd(k, S_B, P_WK, 640 * 12288)
        srd(k, S_C, P_WV, 640 * 12288)
        srd(k, S_D, P_WO, 6144 * 1280)
        srd(k, S_E, P_MEM0, 10240)
        t0, t1, t2, t3, t4, t5 = range(A, A + 6)
        k(f"""v_and_b32 {v(vL)}, 63, v0
        s_mul_i32 {s(sT0)}, {s(sHG)}, 3072
        s_lshl_b32 {s(sT1)}, {s(sT)}, 7
        s_add_u32 {s(sT0)}, {s(sT0)}, {s(sT1)}
        s_mul_i32 {s(sT1)}, {s(sW)}, {8*12288}
        s_add_u32 {s(sT0)}, {s(sT0)}, {s(sT1)}
        v_lshrrev_b32 {v(t0)}, 3, {v(vL)}
        v_mul_u32_u24 {v(t0)}, 12288, {v(t0)}
        v_and_b32 {v(t1)}, 7, {v(vL)}
        v_lshl_add_u32 {v(t0)}, {v(t1)}, 4, {v(t0)}
        v_add_u32 {v(t0)}, {s(sT0)}, {v(t0)}
        s_lshl_b32 {s(sA0)}, {s(sW)}, 10""")

        k(f"""s_lshl_b32 {s(sT0)}, {s(sHG)}, 2
        s_add_u32 {s(sT0)}, {s(sT0)}, {s(sW)}
        s_mul_i32 {s(sT0)}, {s(sT0)}, {384*1280}
        s_lshl_b32 {s(sT1)}, {s(sT)}, 6
        s_add_u32 {s(sT0)}, {s(sT0)}, {s(sT1)}
        s_cmp_lt_u32 {s(sT)}, 20
        s_cselect_b32 {s(sT0)}, {s(sT0)}, {OOB:#x}
        v_lshrrev_b32 {v(t3)}, 2, {v(vL)}
        v_mul_u32_u24 {v(t3)}, 1280, {v(t3)}
        v_and_b32 {v(t4)}, 3, {v(vL)}
        v_lshl_add_u32 {v(t3)}, {v(t4)}, 4, {v(t3)}
        v_add_u32 {v(t3)}, {s(sT0)}, {v(t3)}
        s_lshl_b32 {s(sA1)}, {s(sW)}, 12""")
        NSL = 10

        def stage(c):
            for i in range(4):
                if c >= 6:
                    k(f"""s_add_u32 m0, {s(sA0)}, {(c%NSL)*16384+4096*i}
                    s_mov_b32 {s(sT1)}, {(((c-6)%5)*128+32*i)*12288}
                    buffer_load_dwordx4 {v(t0)}, {s((S_A,S_B,S_C)[(c-6)//5],4)}, {s(sT1)} offen {NT}lds""")
                else:
                    k(f"""s_add_u32 m0, {s(sA1)}, {(c%NSL)*16384+1024*i}
                    s_mov_b32 {s(sT1)}, {(c*64+16*i)*1280}
                    buffer_load_dwordx4 {v(t3)}, {s(S_D,4)}, {s(sT1)} offen lds""")
        for c in range(o.carr):
            stage(c)
        j_, hf, g_, t_, u0, u1, u2 = range(MF, MF + 7)
        k(f"""v_and_b32 {v(j_)}, 7, {v(vL)}
        v_bfe_u32 {v(hf)}, {v(vL)}, 3, 1
        v_lshrrev_b32 {v(g_)}, 4, {v(vL)}
        v_and_b32 {v(t_)}, 15, {v(vL)}
        v_lshlrev_b32 {v(vT16)}, 4, v0
        v_lshlrev_b32 {v(vT8)}, 3, v0
        v_add_u32 {v(vT8)}, 8192, {v(vT8)}
        v_lshlrev_b32 {v(vL16)}, 4, {v(vL)}
        v_lshlrev_b32 {v(vL8)}, 3, {v(vL)}
        v_lshlrev_b32 {v(vL4)}, 2, {v(vL)}
        s_add_u32 {s(sT0)}, {s(sW)}, 1
        s_mul_i32 {s(sT0)}, {s(sT0)}, 1280
        v_add_u32 {v(vL16x)}, {s(sT0)}, {v(vL16)}
        v_add_u32 {v(vL4x)}, {s(sT0)}, {v(vL4)}
        v_cmp_eq_u32 {s(sHF,2)}, 1, {v(hf)}
        v_cmp_lt_u32 {s(sG2,2)}, 1, {v(g_)}
        v_mov_b32 {v(u0)}, 0x4444
        v_mov_b32 {v(u1)}, 0xeeee
        v_cndmask_b32 {v(vIDX)}, {v(u0)}, {v(u1)}, {s(sHF,2)}
        v_mov_b32 {v(u0)}, 0xffff
        v_mov_b32 {v(u1)}, 0xffff0000
        v_cndmask_b32 {v(vMH)}, {v(u0)}, {v(u1)}, {s(sHF,2)}
        v_mul_u32_u24 {v(vXr0)}, 10240, {v(hf)}
        v_lshl_add_u32 {v(vXr0)}, {v(j_)}, 7, {v(vXr0)}
        v_xor_b32 {v(u0)}, {v(g_)}, {v(j_)}
        v_lshl_add_u32 {v(vXr0)}, {v(u0)}, 4, {v(vXr0)}
        v_add_u32 {v(vXr0)}, {XT}, {v(vXr0)}
        v_xor_b32 {v(vXr1)}, 64, {v(vXr0)}
        v_lshrrev_b32 {v(u0)}, 5, {v(vL)}
        v_and_b32 {v(u1)}, 1, {v(g_)}
        v_lshlrev_b32 {v(u2)}, 4, {v(t_)}
        v_lshl_add_u32 {v(u2)}, {v(u1)}, 3, {v(u2)}
        v_lshl_add_u32 {v(vQKw)}, {v(u0)}, 10, {v(u2)}
        s_lshl_b32 {s(sT0)}, {s(sW)}, 8
        v_add_u32 {v(vQKw)}, {s(sT0)}, {v(vQKw)}
        v_lshl_add_u32 {v(vXQw)}, {v(u0)}, 8, {v(u2)}
        s_lshl_b32 {s(sT0)}, {s(sW)}, 9
        v_add_u32 {v(vXQw)}, {s(sT0)}, {v(vXQw)}
        v_lshlrev_b32 {v(vWRw)}, 9, {v(u1)}
        v_lshl_add_u32 {v(vWRw)}, {v(u0)}, 6, {v(vWRw)}
        v_bfe_u32 {v(u2)}, {v(vL)}, 1, 1
        v_lshl_add_u32 {v(vWRw)}, {v(u2)}, 5, {v(vWRw)}
        v_bfe_u32 {v(u2)}, {v(vL)}, 2, 2
        v_lshl_add_u32 {v(vWRw)}, {v(u2)}, 3, {v(vWRw)}
        v_and_b32 {v(u1)}, 1, {v(vL)}
        v_lshl_add_u32 {v(vWRw)}, {v(u1)}, 2, {v(vWRw)}
        s_lshl_b32 {s(sT0)}, {s(sW)}, 10
        s_add_u32 {s(sT0)}, {s(sT0)}, {WR}
        v_add_u32 {v(vWRw)}, {s(sT0)}, {v(vWRw)}
        v_lshl_add_u32 {v(vQKr)}, {v(g_)}, 3, {v(u2)}
        v_lshlrev_b32 {v(vQKr)}, 4, {v(vQKr)}
        v_lshl_add_u32 {v(vQKr)}, {v(u1)}, 3, {v(vQKr)}
        v_bfe_u32 {v(u0)}, {v(vL)}, 1, 2
        v_lshlrev_b32 {v(vAG)}, 7, {v(u0)}
        v_lshrrev_b32 {v(u0)}, 3, {v(vL)}
        v_lshl_add_u32 {v(vAG)}, {v(u0)}, 4, {v(vAG)}
        v_lshl_add_u32 {v(vAG)}, {v(u1)}, 3, {v(vAG)}
        s_lshl_b32 {s(sT0)}, {s(sT)}, 9
        s_add_u32 {s(sT0)}, {s(sT0)}, {R_AG}
        v_add_u32 {v(vAG)}, {s(sT0)}, {v(vAG)}
        s_lshl_b32 {s(sT2)}, {s(sT)}, 10
        s_and_b32 {s(sT0)}, {s(sT2)}, 0x6000
        s_add_u32 {s(sT0)}, {s(sT0)}, {s(sT2)}
        s_lshl_b32 {s(sT1)}, {s(sL)}, 20
        s_add_u32 {s(sT0)}, {s(sT0)}, {s(sT1)}
        s_add_u32 {s(sT0)}, {s(sT0)}, {X3R}
        v_add_u32 {v(vX3)}, {s(sT0)}, {v(vL16)}
        s_and_b32 {s(sT0)}, {s(sW)}, 1
        s_lshl_b32 {s(sT0)}, {s(sT0)}, 3
        s_lshr_b32 {s(sT1)}, {s(sW)}, 1
        v_lshl_add_u32 {v(u1)}, {v(g_)}, 4, {v(j_)}
        v_add_u32 {v(u1)}, {s(sT0)}, {v(u1)}
        s_lshl_b32 {s(sT0)}, {s(sT1)}, 11
        v_lshl_add_u32 {v(vQXr)}, {v(u1)}, 4, {s(sT0)}
        s_mul_i32 {s(sT0)}, {s(sT1)}, 1536
        v_lshlrev_b32 {v(vPw2)}, 4, {v(u1)}
        v_lshlrev_b32 {v(vPw8)}, 3, {v(u1)}
        v_add_u32 {v(vPw8)}, 1024, {v(vPw8)}
        v_cndmask_b32 {v(vPw8)}, {v(vPw2)}, {v(vPw8)}, {s(sHF,2)}
        v_add_u32 {v(vPw8)}, {s(sT0)}, {v(vPw8)}
        v_lshl_add_u32 {v(vPw2)}, {v(hf)}, 1, {v(vPw2)}
        v_add_u32 {v(vPw2)}, {s(sT0)}, {v(vPw2)}
        s_lshl_b32 {s(sT0)}, {s(sW)}, 8
        s_add_u32 {s(sT0)}, {s(sT0)}, {s(sT2)}
        s_add_u32 {s(sT0)}, {s(sT0)}, {R_X2}
        v_lshlrev_b32 {v(u0)}, 5, {v(j_)}
        v_lshl_add_u32 {v(vO2)}, {v(g_)}, 3, {v(u0)}
        v_add_u32 {v(vO2)}, {s(sT0)}, {v(vO2)}
        v_mov_b32 {v(u1)}, {OOB:#x}
        v_cndmask_b32 {v(vO2)}, {v(vO2)}, {v(u1)}, {s(sHF,2)}
        v_lshl_add_u32 {v(vO2l)}, {v(g_)}, 8, {v(u0)}
        v_lshl_add_u32 {v(vO2l)}, {v(hf)}, 4, {v(vO2l)}
        s_mul_i32 {s(sT0)}, {s(sW)}, 6144
        s_add_u32 {s(sT0)}, {s(sT0)}, {R_X2}
        v_add_u32 {v(vO2l)}, {s(sT0)}, {v(vO2l)}
        ; workgroups without Wo duty use these loads to pull a later x tile into this die's L2
        s_lshl_b32 {s(sT0)}, {s(sT)}, 2
        s_add_u32 {s(sT0)}, {s(sT0)}, {s(sW)}
        s_sub_u32 {s(sT0)}, {s(sT0)}, 80
        s_lshl_b32 {s(sT2)}, {s(sT0)}, 12
        s_and_b32 {s(sT1)}, {s(sT2)}, 0xe000
        s_add_u32 {s(sT2)}, {s(sT2)}, {s(sT1)}
        s_cmp_lt_u32 {s(sT0)}, 10
        s_cselect_b32 {s(sT0)}, {s(sT2)}, {OOB:#x}
        v_add_u32 {v(u1)}, {s(sT0)}, {v(vL16)}
        s_cmp_lt_u32 {s(sT)}, 20
        s_cselect_b64 vcc, -1, 0
        v_cndmask_b32 {v(vO2l)}, {v(u1)}, {v(vO2l)}, vcc
        s_lshl_b32 {s(sOXB)}, {s(sT)}, 12
        s_mul_i32 {s(sT2)}, {s(sHG)}, {2*49152}
        s_add_u32 {s(sOXB)}, {s(sOXB)}, {s(sT2)}
        s_mul_i32 {s(sT2)}, {s(sL)}, {OXL}
        s_add_u32 {s(sOXB)}, {s(sOXB)}, {s(sT2)}
        s_add_u32 {s(sOXB)}, {s(sOXB)}, {OX}
        v_lshlrev_b32 {v(u0)}, 2, {v(g_)}
        v_lshl_add_u32 {v(u0)}, {v(hf)}, 4, {v(u0)}
        s_lshl_b32 {s(sT2)}, {s(sW)}, 3
        v_add_u32 {v(u1)}, {s(sT2)}, {v(j_)}""")
        scale = 192 ** -0.5
        k(f"v_mov_b32 {v(u2)}, {f2u(-1e9/scale/3)}")
        for r in range(4):
            k(f"v_cmp_gt_u32 vcc, {v(u0)}, {v(u1)}\nv_cndmask_b32 {v(MASK+r)}, 0, {v(u2)}, vcc\nv_add_u32 {v(u0)}, 1, {v(u0)}")
        for r in range(4):
            k(f"v_mov_b32 {v(ONES+r)}, {'0x3f803f80' if r < 3 else 0}")
        k(f"""v_mov_b32 {v(VA+3)}, 0
        v_mov_b32 {v(VB+3)}, 0
        s_mov_b32 {s(sC)}, {f2u(scale*math.log2(math.e))}
        s_cmp_lt_u32 {s(sT)}, 20
        s_cselect_b32 {s(cX2)}, 4096, 0
        s_lshl_b32 {s(sXM0)}, {s(sW)}, 10
        s_add_u32 {s(sXM0)}, {s(sXM0)}, {XT}
        s_lshl_b32 {s(sHb)}, {0 if o.nowait else s(sL)}, 23
        s_add_u32 {s(sHb)}, {s(sHb)}, {HA}
        s_mov_b32 {s(sH)}, {s(sHb)}
        s_mul_i32 {s(sT0)}, {s(sT)}, 43
        s_lshr_b32 {s(sT0)}, {s(sT0)}, 7
        s_mul_i32 {s(sT0)}, {s(sT0)}, 3
        s_add_u32 {s(sT1)}, {s(sT0)}, 3
        s_add_u32 {s(cP1)}, {s(sT)}, 1
        s_cmp_eq_u32 {s(cP1)}, {s(sT1)}
        s_cselect_b32 {s(cP1)}, {s(sT0)}, {s(cP1)}
        s_add_u32 {s(cP2)}, {s(cP1)}, 1
        s_cmp_eq_u32 {s(cP2)}, {s(sT1)}
        s_cselect_b32 {s(cP2)}, {s(sT0)}, {s(cP2)}
        s_mul_i32 {s(cOWN)}, {s(sT)}, 6400
        s_mul_i32 {s(cP1)}, {s(cP1)}, 6400
        s_mul_i32 {s(cP2)}, {s(cP2)}, 6400""")

        def st5(d, so, x):
            return [f"buffer_store_dwordx4 {v(d,4)}, {v(vL16x if x else vL16)}, {WS}, {s(so)} offen",
                    f"buffer_store_dword {v(d+4)}, {v(vL4x if x else vL4)}, {WS}, {s(so)} offen offset:1024"]

        def ld5(d, d1, so, x):
            return [f"buffer_load_dwordx4 {v(d,4)}, {v(vL16x if x else vL16)}, {WS}, {s(so)} offen sc1",
                    f"buffer_load_dword {v(d1)}, {v(vL4x if x else vL4)}, {WS}, {s(so)} offen offset:1024 sc1"]

        def x3_adr(dst, slot):
            return [f"s_lshr_b32 {s(dst)}, {s(slot)}, 2", f"s_and_b32 {s(dst)}, {s(dst)}, 0xf0000"]

        flat = lambda L: [x for g in L for x in (g if isinstance(g, (list, tuple)) else [g]) if isinstance(x, str)]

        def x_dma():
            return [[f"s_add_u32 m0, {s(sXM0)}, {4096*i}", f"s_add_u32 {s(sHD)}, {s(sH)}, {(i>>1)*16384+(i&1)*4096}",
                     f"buffer_load_dwordx4 {v(vT16)}, {WS}, {s(sHD)} offen sc1 lds"] for i in range(10)]
        cB = 24

        def x_dma3(w3):
            out = []
            for j in range(0 if w3 else 3):
                out += [[f"s_add_u32 m0, {s(sXM3)}, {12288*j}", f"s_add_u32 {s(sHD)}, {s(sH)}, {s(cB+j)}"][:2 if i == 0 else 0] +
                        [f"buffer_load_dwordx4 {v(vL16)}, {WS}, {s(sHD)} offen offset:{1024*i} sc1 lds"] for i in range(4)]
            return out + x_dma()[9:]
        x_adv = [f"s_mov_b32 {s(sH)}, {s(sHn)}", f"s_xor_b32 {s(sXM0)}, {s(sXM0)}, 65536", f"s_add_u32 {s(sHb)}, {s(sHb)}, {HSEG}"] + \
            self.near(sHn, sHb, sPAR, s(sNM))
        self.pstamp(3)
        self.arrive0(4 * o.carr, 1)
        for c in range(o.carr, NSL - 1):
            stage(c)
        k(f"""v_bfe_u32 {v(t2)}, {v(vL)}, 2, 2
        v_lshl_add_u32 {v(t1)}, {v(g_)}, 3, {v(t2)}
        v_lshlrev_b32 {v(t1)}, 7, {v(t1)}
        v_lshl_add_u32 {v(t1)}, {v(t4)}, 3, {v(t1)}
        s_lshl_b32 {s(sT0)}, {s(sW)}, 5
        v_add_u32 {v(t1)}, {s(sT0)}, {v(t1)}
        v_lshrrev_b32 {v(t5)}, 5, {v(vL)}
        v_lshlrev_b32 {v(t5)}, 4, {v(t5)}
        v_lshl_add_u32 {v(t5)}, {v(hf)}, 3, {v(t5)}
        v_and_b32 {v(u0)}, 1, {v(g_)}
        v_lshl_add_u32 {v(t5)}, {v(u0)}, 2, {v(t5)}
        v_bfe_u32 {v(u0)}, {v(vL)}, 2, 1
        v_add_u32 {v(t5)}, {v(t5)}, {v(u0)}
        v_lshlrev_b32 {v(t5)}, 6, {v(t5)}
        v_lshl_add_u32 {v(t5)}, {v(t4)}, 3, {v(t5)}
        v_add_u32 {v(t5)}, {s(sA1)}, {v(t5)}""")
        go_ld = f"buffer_load_dwordx3 {v(A+22,3)}, off, {DBGS}, 0 offset:{self.D_GO} sc1"
        for c in range(21):
            if c == 15:
                chk, rty = self.lab('gchk'), self.lab('grty')
                k(f"{chk}:\nv_min_u32 {v(A+20)}, {v(A+22)}, {v(A+24)}\nv_cmp_eq_u32 vcc, 0, {v(A+20)}\ns_cbranch_vccnz {rty}")
                self.ool.append([rty + ':', 's_sleep 8', go_ld] + self.timeout(1) + ['s_waitcnt vmcnt(0)', f's_branch {chk}'])
            k(f"s_waitcnt vmcnt({4*min(NSL-2, 20-c) + (22 if c > 15 else 0)})")
            self.barrier()
            if c == 15:
                l0, l1 = self.lab('t0'), self.lab('t0')
                k(f"""v_mul_u32_u24 {v(A+6)}, 1280, {v(j_)}
                v_lshrrev_b32 {v(A+7)}, 4, v0
                v_lshl_add_u32 {v(A+6)}, {v(A+7)}, 5, {v(A+6)}
                v_lshl_add_u32 {v(A+6)}, {v(hf)}, 2, {v(A+6)}""")
                for i in range(3):
                    for p in range(4):
                        k(f"buffer_load_dword {v(A+8+4*i+p)}, {v(A+6)}, {s(S_E,4)}, 0 offen offset:{512*i+8*p}")
                k(f"s_cmp_eq_u32 {s(sL)}, 0\ns_cbranch_scc1 {l0}\ns_waitcnt vmcnt(0)\ns_branch {l1}\n{l0}:")
                k.many(flat(x_dma()))
                k(l1 + ':')
            if c + NSL - 1 < 21:
                stage(c + NSL - 1)
            if c == o.carr:
                self.arrive0(0, 2)
                self.pstamp(4)
            if c == o.gpos:
                k(go_ld)
            k(f"v_add_u32 {v(t2)}, {(c%NSL)*16384}, {v(t1 if c >= 6 else t5)}")
            if c >= 6:
                for i in range(4):
                    for h in range(2):
                        k(f"ds_read_b64_tr_b16 {a(16*(c-6)+4*i+2*h,2)}, {v(t2)} offset:{i*4096+h*512}")
            else:
                for t in range(2):
                    for f in range(2):
                        for h in range(2):
                            k(f"ds_read_b64_tr_b16 {WO(2*c+t,2,4*f+2*h)}, {v(t2)} offset:{f*2048+h*128+t*32}")
            if c in (9, 14):
                self.pstamp(5 if c == 9 else 6)
        self.pstamp(7)
        self.barrier()

        PD = 5

        def xread(hs):
            ks, mt = hs >> 1, hs & 1
            return f"ds_read_b128 {v(FB+4*(hs%6),4)}, {v(vXr1 if ks & 1 else vXr0)} offset:{mt*20480+(ks>>1)*1024}"
        xpos = [0]

        def xm(n):
            out = []
            for i in range(n):
                hs, m = divmod(xpos[0], 3)
                xpos[0] += 1
                ks, mt = hs >> 1, hs & 1
                f = v(FB + 4 * (hs % 6), 4)
                x, y = ((WQ(ks), f), (WK(ks), f), (f, WV(ks)))[m]
                acc = v(XA + 8 * m + 4 * mt, 4)
                out.append((f"v_mfma_f32_16x16x32_bf16 {acc}, {x}, {y}, {acc if ks else 0}",
                            f"need {v(FB+4*((hs+1)%6),4)}" if m == 2 and i + 1 < n else None,
                            xread(hs + PD) if m == 0 and hs + PD < 40 else None))
            return out

        def xs(n, *queues):
            pack(k, xm(n), queues)

        def spaced(groups, n=3):
            return [x for g in groups for x in list(g) + [n]]

        AQ, AK, AV = A, A + 4, A + 8
        zero_acc = [f"v_mov_b64 {v(A+2*i,2)}, 0" for i in range(6)]

        def x_finish():
            assert xpos[0] == 120
            out = [f"v_xor_b32 {v(vXr0)}, 0x10000, {v(vXr0)}", f"v_xor_b32 {v(vXr1)}, 0x10000, {v(vXr1)}"]
            for m in range(3):
                for mt in range(2):
                    acc = XA + 8 * m + 4 * mt
                    d = acc if m < 2 else (VA, VB)[mt]
                    out += [f"v_cvt_pk_bf16_f32 {v(d)}, {v(acc)}, {v(acc+1)}", f"v_cvt_pk_bf16_f32 {v(d+1)}, {v(acc+2)}, {v(acc+3)}"]
                    if m < 2:
                        out.append(f"ds_write_b64 {v(vXQw)}, {v(d,2)} offset:{XQ+4096*m+2048*mt}")
            return out

        def tag(r):
            return f"v_bfi_b32 {v(r)}, 1, {s(sTAG)}, {v(r)}"

        def select5(dst, s0, s1, sm, tagged):
            x = [f"v_cndmask_b32 {v(dst+r)}, {v(s0+r)}, {v(s1+r)}, {s(sHF,2)}" for r in range(4)]
            return [f"v_cndmask_b32 {v(sm)}, {v(sm)}, {v(sm+1)}, {s(sHF,2)}",
                    f"v_cndmask_b32 {v(sm+2)}, {v(sm+2)}, {v(sm+3)}, {s(sHF,2)}",
                    f"v_cndmask_b32 {v(dst+4)}, {v(sm)}, {v(sm+2)}, {s(sG2,2)}"] + \
                ([tag(dst + 4)] + x + [tag(dst)] if tagged else x)

        def add4(d, x, y, pk):
            if pk:
                return [f"v_pk_add_f32 {v(d+r,2)}, {v(x+r,2)}, {v(y+r,2)}" for r in (0, 2)]
            return [f"v_add_f32 {v(d+r)}, {v(x+r)}, {v(y+r)}" for r in range(4)]

        def add5(x, ld, pk):
            return add4(ld, ld, ld + 4, pk) + [f"v_add_f32 {v(ld+8)}, {v(ld+8)}, {v(ld+9)}"] + add4(x, x, ld, pk) + \
                [f"v_add_f32 {v(x+4)}, {v(x+4)}, {v(ld+8)}"]

        def softmax5(x, t, fill=()):
            fill = list(fill) + [[]] * 3
            out = []
            out += [f"v_max3_f32 {v(t)}, {v(x)}, {v(x+1)}, {v(x+2)}", f"v_max3_f32 {v(t)}, {v(t)}, {v(x+3)}, {v(x+4)}"] + fill[0] + \
                [f"v_max_f32_dpp {v(t)}, {v(t)}, {v(t)} row_ror:8 row_mask:0xf bank_mask:0xf", f"v_mov_b32 {v(t+1)}, {v(t)}"] + fill[1] + \
                [f"v_permlane16_swap_b32 {v(t)}, {v(t+1)}", f"v_max_f32 {v(t)}, {v(t)}, {v(t+1)}", f"v_mov_b32 {v(t+1)}, {v(t)}"] + fill[2] + \
                [f"v_permlane32_swap_b32 {v(t)}, {v(t+1)}", f"v_max_f32 {v(t)}, {v(t)}, {v(t+1)}", f"v_mul_f32 {v(t)}, {s(sC)}, {v(t)}"]
            out += [f"v_fma_f32 {v(x+r)}, {v(x+r)}, {s(sC)}, -{v(t)}" for r in (4, 0, 1, 2, 3)]
            out += [f"v_exp_f32 {v(x+r)}, {v(x+r)}" for r in (4, 0, 1, 2, 3)]
            return out

        FLV = T2
        fl_ld = f"buffer_load_dword {v(FLV)}, {v(vFl)}, {WS}, 0 offen sc1"

        def wait_h(want_add):
            chk, rty = self.lab('fchk'), self.lab('frty')
            self.ool.append([rty + ':', f's_sleep {o.fsleep}', fl_ld] + self.timeout(10) + ['s_waitcnt vmcnt(0)', f's_branch {chk}'])
            return [f"v_lshl_add_u32 {v(FLV+1)}, {s(sS)}, 1, {v(vFa)}"] + \
                ([f"v_add_u32 {v(FLV+1)}, {2*want_add-8}, {v(FLV+1)}"] if want_add != 4 else []) + \
                   [f"v_min_i32 {v(FLV+1)}, 128, {v(FLV+1)}",
                    [chk + ':', f"v_cmp_gt_i32 vcc, {v(FLV+1)}, {v(FLV)}", f"s_cbranch_vccnz {rty}"]]

        self.take_par(A + 24)
        k(f"""s_lshl_b32 {s(sNM)}, {0 if o.nowait else s(sL)}, 13
        s_xor_b32 {s(sT0)}, {s(sPAR)}, 0x2000
        v_add_u32 {v(vX3)}, {s(sT0)}, {v(vX3)}""")
        k.many(self.near(sH, sHb, sPAR, s(sNM)) + x_adv[2:])
        self.flag_lines(vFl, u0, False, 31, 3)
        k(f"""v_lshrrev_b32 {v(u0)}, 2, {v(vL)}
        v_and_b32 {v(u0)}, 12, {v(u0)}
        v_and_b32 {v(u1)}, 3, {v(vL)}
        v_add_u32 {v(u0)}, {v(u0)}, {v(u1)}
        s_lshl_b32 {s(sT0)}, {s(sX)}, 14
        s_add_u32 {s(sT0)}, {s(sT0)}, {FLAGS+24*512}
        v_lshl_add_u32 {v(u0)}, {v(u0)}, 7, {s(sT0)}
        v_bfe_u32 {v(u1)}, {v(vL)}, 2, 1
        v_and_b32 {v(u1)}, {0 if o.nowait else s(sL)}, {v(u1)}
        v_cmp_eq_u32 vcc, 1, {v(u1)}
        v_cndmask_b32 {v(vFl)}, {v(u0)}, {v(vFl)}, vcc
        v_mov_b32 {v(u0)}, {4-2*o.oxr if 'T' in o.roles else -500}
        v_cndmask_b32 {v(vFa)}, {v(u0)}, 8, vcc""")
        k(f"""v_mov_b32 {v(A)}, {OOB:#x}
        s_cmp_lt_u32 {s(sT)}, 20
        s_cselect_b32 {s(sLIM)}, {-1 if o.free else -2}, -1
        s_cselect_b64 vcc, -1, 0
        v_mov_b32 {v(SENT)}, -1
        v_cndmask_b32 {v(self.vTagM)}, 0, 1, vcc
        v_cndmask_b32 {v(vAG)}, {v(A)}, {v(vAG)}, vcc
        v_cndmask_b32 {v(vX3)}, {v(A)}, {v(vX3)}, vcc
        s_cmp_eq_u32 {s(sW)}, 2
        s_cselect_b64 vcc, -1, 0
        v_cndmask_b32 {v(vFl)}, {v(A)}, {v(vFl)}, vcc
        v_cmp_ne_u32 {s(sR1,2)}, 0, {v(vL)}
        v_cndmask_b32 {v(vL)}, 0, {v(A)}, {s(sR1,2)}
        v_mov_b32 {v(A)}, {-1000}
        v_cndmask_b32 {v(vFa)}, {v(A)}, {v(vFa)}, vcc""")
        vLane0 = vL
        k(f"""v_mov_b64 {v(A,2)}, 0
        v_mov_b64 {v(A+2,2)}, 0
        ds_write_b128 {v(vT16)}, {v(A,4)} offset:{PX}""")
        for i in range(3):
            k(f"ds_write_b128 {v(vT16)}, {v(A+8+4*i,4)} offset:{MEM+4096*i}")
        l0 = self.lab('t0')
        self.loaded(A + 22, 1)
        k(f"s_cmp_eq_u32 {s(sL)}, 0\ns_cbranch_scc1 {l0}")
        k.many(flat([fl_ld] + wait_h(1)))
        k("s_barrier")
        k.many(flat(x_dma()))
        k("s_waitcnt vmcnt(0)")
        k(f"{l0}:\ns_cmp_lg_u32 {s(sW)}, 1\ns_cbranch_scc1 {l0}a\ns_waitcnt vmcnt(1)\ns_branch {l0}b\n{l0}a:\ns_waitcnt vmcnt(0)\n{l0}b:\ns_barrier")
        self.pstamp(9)
        k.many([xread(hs) for hs in range(PD)] + x_adv)
        k.many([f"s_cmp_lg_u32 {s(sL)}, 0", f"s_cbranch_scc1 {l0}c"] + flat(x_dma()) + [f"{l0}c:"])
        assert o.n5 + o.n6 <= 3 * PD
        q = list(zero_acc)
        xs(120 - o.n6, q)
        if o.fine:
            k.many(x_finish())
        k.many([f"s_cmp_eq_u32 {s(sL)}, 0", f"s_cbranch_scc1 {l0}d", fl_ld] + flat(wait_h(2)) + ["s_barrier"] + flat(x_dma()) + [f"{l0}d:"] + x_adv)
        k(f"""s_lshl_b32 {s(sSLOT)}, {s(sX)}, 20
        {fl_ld}
        s_waitcnt vmcnt(0) lgkmcnt(0)""")
        if not o.hm:
            k.many(flat(wait_h(3)))
        self.loaded(A + 22, 2)
        sXM3 = cB + 3
        for j in range(3):
            k(f"""s_add_u32 {s(sT0)}, {s(sW)}, {3*j}
            s_lshl_b32 {s(cB+j)}, {s(sT0)}, 12
            s_and_b32 {s(sT0)}, {s(cB+j)}, 0xe000
            s_add_u32 {s(cB+j)}, {s(cB+j)}, {s(sT0)}""")
        k(f"s_mul_i32 {s(sXM3)}, {s(sW)}, 3072\ns_add_u32 {s(sXM3)}, {s(sXM3)}, {s(sXM0)}")
        x_adv.append(f"s_xor_b32 {s(sXM3)}, {s(sXM3)}, 65536")
        self.pstamp(10)
        k(f"s_cmp_eq_u32 {s(sW)}, 3\ns_cbranch_scc1 L_Cin3\ns_branch L_Cin0")
        npos = [int(c, 16) for c in o.dpos + '0']
        assert sum(npos) == 10 and (o.hm == 0 or npos[5] == 10)

        def loop(w3):
            n = '3' if w3 else '0'
            TT = A + 24
            ag_ld = lambda b: [f"buffer_load_dwordx4 {v(b[0],4)}, {v(vT16)}, {WS}, {s(sA0)} offen sc1",
                               f"buffer_load_dwordx4 {v(b[1],4)}, {v(vT16)}, {WS}, {s(sA1)} offen sc1",
                               f"buffer_load_dwordx2 {v(b[2],2)}, {v(vT8)}, {WS}, {s(sA0)} offen sc1"]
            AGS = [(A + 12, A + 20, A + 16), (SUMM, SUMX, PM)][:1 if o.agm else o.aga]
            k(f"L_Ctop{n}:")
            xpos[0] = 120 - o.n5 - o.n6
            self.stamp(11)
            ag_use = lambda b: [f"ds_write_b128 {v(vT16)}, {v(b[0],4)} offset:{MEM}", f"ds_write_b128 {v(vT16)}, {v(b[1],4)} offset:{MEM+4096}",
                                f"ds_write_b64 {v(vT8)}, {v(b[2],2)} offset:{MEM}"]
            if o.agm:
                b = AGS[0]
                self.poll_lanes(list(zip(ag_ld(b), ((b[0], b[0] + 2), (b[1], b[1] + 2), (b[2],)))), TT, -1 if o.free else -2, sMSK, ag_use(b), 15, early=o.agm == 1)
            else:
                self.poll(AGS, ag_ld, lambda b: self.bad_empty((b[0], b[0] + 2, b[1], b[1] + 2, b[2]), TT), ag_use, 15, early=True)
            self.stamp(12)
            xs(o.n5)
            self.stamp(21)
            k(f"L_Cin{n}:\ns_barrier")
            self.stamp(0)
            KXF, QXF = XA, XA + 16
            mrd = [f"ds_read_b128 {v(MF+4*i,4)}, {v(vL16)} offset:{MEM+1024*i}" for i in range(10)]
            adr = [f"s_andn2_b32 {s(sS2)}, {s(sSLOT)}, {2*SLOT}", f"s_lshr_b32 {s(sTAG)}, {s(sS)}, 1",
                   f"s_add_u32 {s(sOWN)}, {s(sS2)}, {s(cOWN)}", f"s_add_u32 {s(sP1)}, {s(sS2)}, {s(cP1)}",
                   f"s_add_u32 {s(sP2)}, {s(sS2)}, {s(cP2)}",
                   [f"s_cmp_lt_u32 {s(sT)}, 20", f"s_cselect_b32 {s(sX2a)}, {s(sSLOT)}, {s(sH if o.hm else sHn)}"],
                   f"s_add_u32 {s(sX2b)}, {s(sX2a)}, {s(cX2)}", f"s_xor_b32 {s(sR1)}, {s(sSLOT)}, {2*SLOT}"]
            if w3:
                adr += x3_adr(sX3, sS2) + [f"s_xor_b32 {s(sA0+i)}, {s(sX3)}, {(i+1)<<18}" for i in range(3)]
            k.many(mrd[:o.nm0])
            mq = mrd[o.nm0:]
            xs(o.n6, mq, adr)
            k.many([fl_ld] if o.hm == 1 and not w3 else [])
            self.stamp(22)
            dma = x_dma3(w3) if o.d3 else x_dma()
            dq = []

            def dm(place):
                dq.extend(spaced([dma.pop(0) for _ in range(len(dma) if place == 5 else min(len(dma), npos[place]))], o.dsp))
                return dq

            def smf(acc, i, W):
                return f"v_smfmac_f32_16x16x64_bf16 {v(acc,4)}, {v(MF+4*i,4)}, {W(2*i,8)}, {v(vIDX)}"
            fin = x_finish() if not o.fine else []
            xpos[0] = 0
            QM, KM = FB, FB + 8
            S0, S1, SM = A + 12, A + 16, A + 20
            kx_rd = [[f"ds_read_b128 {v(KXF+8*kt+4*ks,4)}, {v(vL16)} offset:{XQ+4096+2048*kt+1024*ks}" for kt in range(2)] for ks in range(2)]
            qx_rd = [f"ds_read_b128 {v(QXF+4*ks,4)}, {v(vQXr)} offset:{XQ+1024*ks}" for ks in range(2)]
            early = o.fine and o.sxx
            if early:
                mq += flat(kx_rd) + qx_rd

            def scores(qf, c0, d0=S0, d1=S1):
                return [f"v_mfma_f32_16x16x32_bf16 {v(d,4)}, {v(x+4*ks,4)}, {v(qf+4*ks,4)}, {v(d,4) if ks else c}"
                        for ks in range(2) for d, x, c in ((SM, KM, 0), (d0, KXF, c0), (d1, KXF + 8, c0))]
            mq = spaced([[x] for x in mq], 1)
            SX0, SX1 = (FB + 16, FB + 20) if early else (S0, S1)
            sx = scores(QXF, v(MASK, 4), SX0, SX1)
            selx = select5(SUMX, SX0, SX1, SM, True)
            pubx = st5(SUMX, sOWN, True)
            vs = [(smf(AV, i, WV), None, None) for i in range(10)]
            if early:
                vs[o.nv0:o.nv0] = [(sx[i], None, None) for i in (1, 2, 4, 5)]
            pack(k, [x for i in range(10) for x in ((smf(AQ, i, WQ), None, None), (smf(AK, i, WK), f"need {v(MF+4*i+4,4)}" if i < 9 else None, None))] +
                 vs[:o.nv0], (mq, dm(0), fin, adr), fill=o.nv0)
            assert not flat(mq)
            self.stamp(1)
            for r in range(4):
                k(f"v_permlane32_swap_b32 {v(AQ+r)}, {v(AK+r)}")
            k.many(add4(AQ, AQ, AK, True))
            k(f"""v_cvt_pk_bf16_f32 {v(AQ)}, {v(AQ)}, {v(AQ+1)}
            v_cvt_pk_bf16_f32 {v(AQ+1)}, {v(AQ+2)}, {v(AQ+3)}
            ds_write_b64 {v(vQKw)}, {v(AQ,2)} offset:{QK}""")
            self.stamp(23)
            pack(k, vs[o.nv0:o.nv1], (dm(1), fin, adr))
            k.many(flat(fin + adr))
            k("s_barrier")
            self.stamp(2)
            rd = []
            for ks in range(2):
                for mat in range(2):
                    rd += [f"ds_read_b64_tr_b16 {v(FB+8*mat+4*ks+2*h,2)}, {v(vQKr)} offset:{QK+1024*mat+512*ks+64*h}" for h in range(2)]
                rd += [] if early else kx_rd[ks]
            k.many(rd[:4])
            q = rd[4:]
            xq = selx[4:] + ([] if o.sxx == 2 and not w3 else [99]) + pubx[:1] if early else []
            nv2 = o.nv1 + o.nv2 if early else 10
            pack(k, vs[o.nv1:nv2], (q, xq))
            k.many(q)
            q = [] if early else qx_rd
            self.stamp(24)
            sc = scores(QM, 0)
            nd = [f"need {x.split(', ')[1]}, {x.split(', ')[2]}" for x in sc[1:]] + [None]
            pack(k, list(zip(sc, nd, q + [None] * 6)), (xq, dm(6)), fill=2 if early else 0)
            self.stamp(25)
            vmerge = [f"v_permlane32_swap_b32 {v(AV)}, {v(AV+2)}", f"v_permlane32_swap_b32 {v(AV+1)}, {v(AV+3)}",
                      f"v_add_f32 {v(AV)}, {v(AV)}, {v(AV+2)}", f"v_add_f32 {v(AV+1)}, {v(AV+1)}, {v(AV+3)}"] + \
                [f"v_cvt_pk_bf16_f32 {v(d+2)}, {v(AV)}, {v(AV+1)}" for d in (VA, VB)]
            sel = select5(SUMM, S0, S1, SM, w3)
            pub = st5(SUMM, sOWN, False) if w3 else [[], []]
            k.many(flat(([] if early else vmerge[:4]) + sel[:4] + [pub[1]] + sel[4:] + [pub[0]]))
            self.stamp(3)
            WA = A + 12
            if early:
                k.many(flat(xq) + [xread(0), xread(1)])
                q = [xread(4), 2, xread(2), xread(3)]
                pack(k, [(sx[0], None, None), (sx[3], None, None)] + vs[nv2:], (q, dq))
                k.many(flat(q))
            else:
                k.many(vmerge[4:] + [xread(0), xread(1)])
                pack(k, [(x, None, r) for x, r in zip(sx, (xread(4), None, None, xread(2), xread(3), None))], (dq,))
            L2 = MF + 24
            X1S = [MF, MF + 12][:o.x1a]

            def x1_ld(b, x=False):
                p1, p2 = ld5(b, b + 8, sP1, x), ld5(b + 4, b + 9, sP2, x)
                return [p1[0], p2[0], p1[1], p2[1]]
            x1x_ld = x1_ld(L2, True)
            x1_bad = lambda b: self.bad_tag([b, b + 4, b + 8, b + 9], TT, sTAG)
            self.stamp(26)
            wa_zero = [f"v_mov_b64 {v(WA+2*i,2)}, 0" for i in range(4)]
            if early:
                pubx = pubx[1:]
            q = (selx[:4] if early else selx) + (pubx if o.xpub == 0 else []) + (vmerge if early else [])
            xs(o.n1a, dm(2), q)
            l = spaced([x1_ld(b) for b in X1S], o.x1d)[:-1] + ([o.xpub] + pubx if 0 < o.xpub < 99 else [])
            xs(o.n1b, l, q)
            assert not q
            k.many(flat(l))
            self.stamp(4)
            self.poll(X1S, x1_ld, x1_bad, lambda b: add5(SUMM, b, True), 11)
            self.stamp(5)
            d = flat(dm(3))
            del dq[:]
            f = [d[:3] or wa_zero[:2], d[3:] or wa_zero[2:]]
            f[o.x1p:o.x1p] = [x1x_ld[:2], x1x_ld[2:]]
            if o.xpub == 99:
                f = [st5(SUMX, sOWN, True), wa_zero[:2], wa_zero[2:], d]
                d = []
            if o.hm == 2 and not w3:
                f[2] = [fl_ld] + f[2]
            k.many(softmax5(SUMM, TT, f[:3]))
            k(f"""v_cvt_pk_bf16_f32 {v(PM+2)}, {v(SUMM+4)}, {v(SUMM+4)}
            v_cvt_pk_bf16_f32 {v(PM)}, {v(SUMM)}, {v(SUMM+1)}
            v_and_b32 {v(PM+2)}, {v(vMH)}, {v(PM+2)}
            v_cvt_pk_bf16_f32 {v(PM+1)}, {v(SUMM+2)}, {v(SUMM+3)}""")
            k.many(f[3])
            self.stamp(27)
            q = wa_zero[:2 * (len(d) // 3)]
            pack(k, [(f"v_mfma_f32_16x16x32_bf16 {v(dd,4)}, {v(x,4)}, {v(PM,4)}, 0", None, None) for dd, x in ((A + 8, ONES), (A, VA), (A + 4, VB))] +
                 xm(o.n1c), (q,), fill=2 + o.n1c)
            k.many(q)
            k(f"""v_add_f32_dpp {v(A+8)}, {v(A+8)}, {v(A+8)} row_ror:8 row_mask:0xf bank_mask:0xf
            v_rcp_f32 {v(A+8)}, {v(A+8)}""")
            for r in range(4):
                k(f"v_add_f32_dpp {v(A+r)}, {v(A+4+r)}, {v(A+r)} row_ror:8 row_mask:0xf bank_mask:0xf")
            k(f"""v_pk_mul_f32 {v(A,2)}, {v(A,2)}, {v(A+8,2)} op_sel_hi:[1,0]
            v_pk_mul_f32 {v(A+2,2)}, {v(A+2,2)}, {v(A+8,2)} op_sel_hi:[1,0]
            v_cvt_pk_bf16_f32 {v(A)}, {v(A)}, {v(A+1)}
            v_cvt_pk_bf16_f32 {v(A+1)}, {v(A+2)}, {v(A+3)}
            v_min_u32 {v(A)}, -2, {v(A)}
            buffer_store_dwordx2 {v(A,2)}, {v(vO2)}, {WS}, {s(sSLOT)} offen""")
            self.stamp(6)
            x2_ld = [f"buffer_load_dwordx4 {v(MF+4*u,4)}, {v(vO2l)}, {WS}, {s(sX2a if u < 4 else sX2b)} offen offset:{(u%4)*1024} sc1" for u in range(6)]
            l = ([2] + x1x_ld if o.xpub == 99 else []) + [o.x2i] + spaced([[x] for x in x2_ld], o.x2e)
            xs(o.n1d, l)
            if not o.nox & 1:
                self.poll([L2], lambda b: x1x_ld, x1_bad, lambda b: [], 12)
            sm = add5(SUMX, L2, False) + softmax5(SUMX, TT) + [f"v_cvt_pk_bf16_f32 {v(A+6)}, {v(SUMX+4)}, {v(SUMX+4)}",
                f"v_cvt_pk_bf16_f32 {v(A+4)}, {v(SUMX)}, {v(SUMX+1)}", f"v_cvt_pk_bf16_f32 {v(A+5)}, {v(SUMX+2)}, {v(SUMX+3)}",
                f"ds_write_b16 {v(vPw2)}, {v(A+6)} offset:{PX+8}", f"ds_write_b64 {v(vPw8)}, {v(A+4,2)} offset:{PX}"]
            self.stamp(28)
            xs(o.n2a, l, sm)
            k.many(flat(l))
            self.stamp(7)
            wo = lambda u: [f"v_smfmac_f32_16x16x64_bf16 {v(WA+4*t,4)}, {v(MF+4*u,4)}, {WO(2*u+t)}, {v(vIDX)}" for t in range(2)]
            x2_bad = lambda u: [f"v_max_u32 {v(A)}, {v(MF+4*u)}, {v(MF+4*u+2)}", f"v_cmp_lt_u32 vcc, {s(sLIM)}, {v(A)}"]
            if o.x2m:
                for u0 in range(0, 6, o.x2g):
                    us = range(u0, 6)
                    ok, rty = self.lab('wok'), self.lab('wrty')
                    b = [MF + 4 * u + j for u in range(u0, u0 + o.x2g) for j in (0, 2)]
                    first = [f"v_max_u32 {v(A)}, {v(b[0])}, {v(b[1])}"] + [f"v_max3_u32 {v(A)}, {v(A)}, {v(b[j])}, {v(b[j+1])}" for j in range(2, len(b), 2)] + \
                        [f"v_cmp_lt_u32 vcc, {s(sLIM)}, {v(A)}", f"s_cbranch_vccnz {rty}"]
                    k.many(first + [ok + ':'])
                    test = [x for u in us for x in (x2_bad(u)[0], f"v_cmp_lt_u32 {s(sMSK+2*u,2)}, {s(sLIM)}, {v(A)}")]
                    again = [x for u in us for x in (f"s_mov_b64 exec, {s(sMSK+2*u,2)}", x2_ld[u])] + ["s_mov_b64 exec, -1"]
                    self.ool.append([rty + ':'] + test + again + self.timeout(13) + ["s_waitcnt vmcnt(0)"] + first + [f"s_branch {ok}"])
                    ms = [(x, None, None) for u in range(u0, u0 + o.x2g) for x in wo(u)]
                    if u0 + o.x2g < 6:
                        pack(k, ms[:-1], (sm,))
                        k(ms[-1][0])
                    else:
                        pack(k, ms + xm(o.n2b), (sm,), fill=o.n2b)
            elif o.x2g:
                for u0 in range(0, 6, o.x2g):
                    chk, rty = self.lab('wchk'), self.lab('wrty')
                    b = [MF + 4 * u + j for u in range(u0, u0 + o.x2g) for j in (0, 2)]
                    k(f"{chk}:\nv_max_u32 {v(A)}, {v(b[0])}, {v(b[1])}")
                    for j in range(2, len(b), 2):
                        k(f"v_max3_u32 {v(A)}, {v(A)}, {v(b[j])}, {v(b[j+1])}")
                    k(f"v_cmp_lt_u32 vcc, {s(sLIM)}, {v(A)}\ns_cbranch_vccnz {rty}")
                    self.ool.append([rty + ':'] + x2_ld[u0:] + self.timeout(13) + [f's_branch {chk}'])
                    ms = [(x, None, None) for u in range(u0, u0 + o.x2g) for x in wo(u)]
                    if u0 + o.x2g < 6:
                        pack(k, ms[:-1], (sm,))
                        k(ms[-1][0])
                    else:
                        pack(k, ms + xm(o.n2b), (sm,), fill=o.n2b)
            else:
                again, done = self.lab('wagain'), self.lab('wdone')
                k(f"s_mov_b32 {s(sPEND)}, 0")
                second = [again + ':'] + self.timeout(13)
                for u in range(6):
                    miss, nx = self.lab('wmiss'), self.lab('wnext')
                    k.many(x2_bad(u) + [f"s_cbranch_vccnz {miss}"] + wo(u) + [nx + ':'])
                    self.ool.append([miss + ':', x2_ld[u] + " ;@late", f"s_bitset1_b32 {s(sPEND)}, {u}", f"s_branch {nx}"])
                    good, nx2 = self.lab('wgood'), self.lab('wnext')
                    second += [f"s_bitcmp1_b32 {s(sPEND)}, {u}", f"s_cbranch_scc0 {nx2}", "s_waitcnt vmcnt(0)"] + x2_bad(u) + [f"s_cbranch_vccnz {good}"] + wo(u) + \
                              [f"s_andn2_b32 {s(sPEND)}, {s(sPEND)}, {1<<u}", f"s_cbranch_scc0 {done}", f"s_branch {nx2}", good + ':', x2_ld[u] + " ;@late", nx2 + ':']
                k(f"s_cmp_lg_u32 {s(sPEND)}, 0\ns_cbranch_scc1 {again}\n{done}:")
                self.ool.append(second + [f"s_branch {again}"])
            self.stamp(8)
            if not o.x2g:
                xs(o.n2b, sm)
            for r in range(4):
                k(f"v_permlane32_swap_b32 {v(WA+r)}, {v(WA+4+r)}")
            k.many(add4(WA, WA, WA + 4, True))
            k(f"""ds_write2_b32 {v(vWRw)}, {v(WA)}, {v(WA+1)} offset0:0 offset1:32
            ds_write2_b32 {v(vWRw)}, {v(WA+2)}, {v(WA+3)} offset0:64 offset1:96""")
            self.stamp(29)
            k.many(flat(sm))
            q = wait_h(3) if o.hm and not w3 else []
            xs(o.n3a, dm(4), q)
            k.many(flat(q))
            self.stamp(30)
            k("s_barrier")
            self.stamp(9)
            PF, OXP = MF + 28, A + 16
            pv_rd = [f"ds_read_b64 {v(PF+8,2)}, {v(vL8)} offset:{PX+1536+1024}", f"ds_read_b128 {v(PF,4)}, {v(vL16)} offset:{PX}",
                     f"ds_read_b128 {v(PF+4,4)}, {v(vL16)} offset:{PX+1536}"]
            X3O, X3L = MF + 12, MF + 16
            rs = [f"buffer_store_dword {v(SENT)}, {v(vO2)}, {WS}, {s(sR1)} offen"]
            if w3:
                q = [f"ds_read_b128 {v(MF+12+4*w,4)}, {v(vL16)} offset:{WR+w*1024}" for w in range(4)] + pv_rd
                k.many(q[:2])
                q = q[2:]
                xs(o.n3b, q)
                k.many(q + add4(MF + 12, MF + 12, MF + 16, True) + add4(MF + 20, MF + 20, MF + 24, True) + add4(X3O, MF + 12, MF + 20, True))
                k(f"{tag(X3O)}\nbuffer_store_dwordx4 {v(X3O,4)}, {v(vX3)}, {WS}, {s(sX3)} offen sc1")
                rs.append(f"buffer_store_dword {v(SENT)}, {v(vAG)}, {WS}, {s(sR1)} offen")
            else:
                q = ([] if o.hm else [fl_ld]) + pv_rd
                k.many(q[:2])
                q = q[2:]
                xs(o.n3b, q)
                k.many(q)
            rs = [3] + spaced([[x] for x in rs], 3)
            self.stamp(10)
            pv = [f"v_mfma_f32_16x16x16_bf16 {v(A+12,4)}, {v(ONES,2)}, {v(PF+8,2)}, 0",
                  f"v_mfma_f32_16x16x16_bf16 {v(A+4,4)}, {v(VB,2)}, {v(PF+8,2)}, 0",
                  f"v_mfma_f32_16x16x32_bf16 {v(A+8,4)}, {v(ONES,4)}, {v(PF,4)}, 0",
                  f"v_mfma_f32_16x16x32_bf16 {v(A,4)}, {v(VA,4)}, {v(PF,4)}, 0",
                  f"v_mfma_f32_16x16x32_bf16 {v(A+12,4)}, {v(ONES,4)}, {v(PF+4,4)}, {v(A+12,4)}",
                  f"v_mfma_f32_16x16x32_bf16 {v(A+4,4)}, {v(VA,4)}, {v(PF+4,4)}, {v(A+4,4)}"]
            pv = [(x, None, None) for x in pv]
            pack(k, pv[:4] + xm(3) + pv[4:], (rs,))
            self.stamp(31)
            e = []
            for mt in range(2):
                e += [f"v_rcp_f32 {v(A+8+4*mt)}, {v(A+8+4*mt)}"] + [f"v_mul_f32 {v(A+4*mt+r)}, {v(A+4*mt+r)}, {v(A+8+4*mt)}" for r in range(4)]
                e += [f"v_cvt_pk_bf16_f32 {v(OXP+2*mt+i)}, {v(A+4*mt+2*i)}, {v(A+4*mt+2*i+1)}" for i in range(2)]
                e += [f"buffer_store_dwordx2 {v(OXP+2*mt,2)}, {v(vOX)}, {WS}, {s(sOXB)} offen offset:{2048*mt} ;@w=ox"]
            e += [[f"s_cmp_eq_u32 {s(sS)}, 63", "s_cbranch_scc1 L_Clast"]]
            ad = self.adv(sOXB, 8 * 49152)
            e += ad[:2] + [ad[2:4], ad[4]] + zero_acc
            flag = [f"v_add_u32 {v(TT)}, {s(sS)}, 1".replace('v_add_u32', 'v_add_u32_e64'),
                    f"buffer_store_dword {v(TT)}, {v(vLane0)}, {WS}, {s(sFLOC)} offen ;@r=ox"]
            if o.stamps == 6:
                flag.append(["s_mov_b64 exec, 1", f"s_add_u32 s36, {s(sS)}, 1"] + self.trace(TT, 's36') + ["s_mov_b64 exec, -1"])
            nxt = [f"s_add_u32 {s(sA0)}, {s(sSLOT)}, {R_AG}", f"s_add_u32 {s(sA1)}, {s(sSLOT)}, {R_AG+4096}"]
            nxt2 = [f"s_add_u32 {s(sX2b)}, {s(sSLOT)}, {SLOT}", f"s_and_b32 {s(sX2b)}, {s(sX2b)}, {3*SLOT}",
                    f"s_andn2_b32 {s(sSLOT)}, {s(sSLOT)}, {3*SLOT}", f"s_or_b32 {s(sSLOT)}, {s(sSLOT)}, {s(sX2b)}"] + x_adv
            rest = 120 - o.n4 - o.n5 - o.n6 - xpos[0] - o.n3c - o.n3d
            assert rest >= 0, rest
            if w3:
                x3_ld = lambda b: [f"buffer_load_dwordx4 {v(b+4*i,4)}, {v(vX3)}, {WS}, {s(sA0+i)} offen sc1" for i in range(3)]
                X3S = [MF + 16, MF][:o.x3a]
                x3_bad = lambda b: self.bad_tag([b, b + 4, b + 8], TT, sTAG)
                x3_use = lambda b: add4(X3O, X3O, b, True) + add4(b + 4, b + 4, b + 8, True) + add4(X3O, X3O, b + 4, True)
                pub = [f"v_cvt_pk_bf16_f32 {v(X3O)}, {v(X3O)}, {v(X3O+1)}", f"v_cvt_pk_bf16_f32 {v(X3O+1)}, {v(X3O+2)}, {v(X3O+3)}",
                       f"v_min_u32 {v(X3O)}, -2, {v(X3O)}", f"buffer_store_dwordx2 {v(X3O,2)}, {v(vAG)}, {WS}, {s(sSLOT)} offen"]
                tmp = Asm()
                self.k = tmp
                self.stamp(34)
                self.k = k
                pub += [it.text for _, it in tmp.items] + (["s_barrier"] if o.b5 else [])
                xs(o.n3c, rs, e)
                self.stamp(32)
                l = spaced([x3_ld(b) for b in X3S], o.x3d)
                xs(o.n3d, l, *([] if o.ad3 else [dm(5)]), rs, e)
                k.many(flat(l + e[:max(0, len(e) - 10)]))
                e = e[max(0, len(e) - 10):]
                self.stamp(33)
                segs = []
                for j in range(o.adn if o.ad3 else 0):
                    b, got = X3S[j % len(X3S)], self.lab('got')
                    tmp = Asm()
                    pack(tmp, xm(o.x3d), (rs, e))
                    segs.append([f"L_C3b{j}:"] + [it.text for _, it in tmp.items])
                    k.many(x3_bad(b) + [f"s_cbranch_vccz {got}"] + segs[-1][1:2] + x3_ld(b) + segs[-1][2:])
                    self.ool.append([got + ':'] + x3_use(b) + pub + [f"s_branch L_C3b{j}"])
                    rest -= o.x3d
                assert rest >= 0
                j = len(segs) % len(X3S)
                self.poll(X3S[j:] + X3S[:j], x3_ld, x3_bad, x3_use, 14)
                k.many(pub + ["L_C3c:"])
                if segs:
                    self.ool.append(flat(segs) + ["s_branch L_C3c"])
                e += flag
                xs(rest, nxt, dm(5), rs, e)
            else:
                e += [o.fgap] + flag + ([] if o.hm else wait_h(4))
                xs(o.n3e, rs, e)
                if o.b5:
                    r0 = o.rest0 if o.ad3 else rest
                    assert o.n3c + o.n3d + rest - r0 - o.n3e >= 0
                    xs(o.n3c + o.n3d + rest - r0 - o.n3e, nxt, dm(5), rs, e)
                    k.many(flat(dq))
                    del dq[:]
                    k("s_barrier")
                    xs(r0, nxt, rs, e)
                else:
                    xs(o.n3c + o.n3d + rest - o.n3e, nxt, dm(5), rs, e)
            k.many(flat(nxt + dq + rs))
            self.stamp(35)
            l = spaced([ag_ld(b) for b in AGS], o.agd)
            xs(o.n4, l, e, nxt2)
            k.many(flat(l + e + nxt2))
            if o.fine:
                k.many(x_finish())
            self.stamp(20)
            self.stamps_out(13, TT)
            k(f"s_add_u32 {s(sS)}, {s(sS)}, 1\ns_branch L_Ctop{n}")
            self.flush_ool()
        self.flush_ool()
        n0 = len(k.items)
        loop(True)
        loop(False)
        if o.nox:
            drop = ([f"{v(vL16x)},", f"{v(vL4x)},"] if o.nox & 1 else []) + ([f"{v(vOX)}, s", f"{v(vLane0)}, s", f"{v(vFl)}, s"] if o.nox & 2 else [])
            k.items[n0:] = [x for x in k.items[n0:] if not (x[0] == 'ins' and x[1].is_vm and any(d in x[1].text for d in drop))]
        k.many(['L_Clast:', 's_waitcnt vmcnt(0)'] + self.put_flag(A, 64, False))
        self.pstamp(11)
        k('s_endpgm')

    def role_T(self):
        k, o = self.k, self.o
        k("L_roleT:")
        if not self.role_gate('T'):
            return
        WL = 98304
        V = Alloc(4, 256)
        S = Alloc(S_FREE, 102)
        vL = 1
        WV_ = V(160, 4)
        ACC, FB, WB, PK = V(40, 4), V(16, 4), V(16, 4), V(2, 2)
        vT16, vRd, vWr, vSt, vStC, vFl = (V() for _ in range(6))
        FL = V()
        sIN, sOB, sOUT, sBUF, sPRE, sNH, sKH, sO1, sO2 = (S() for _ in range(9))

        def W(ks, t, c=4, o=0):
            if t < 4:
                n = 4 * ks + t
                return a(4 * n + o, c) if n < 64 else v(WV_ + 4 * (n - 64) + o, c)
            return v(WV_ + 128 + 4 * (ks - 16) + o, c) if ks >= 16 else v(WB + 4 * (ks & 3) + o, c)
        srd(k, S_D, P_WO, 6144 * 1280)
        t0, t1, t2, t3, t4, t5, t6, t7 = range(ACC, ACC + 8)
        k(f"""v_and_b32 {v(vL)}, 63, v0
        s_and_b32 {s(sNH)}, {s(sT)}, 1
        s_bfe_u32 {s(sKH)}, {s(sT)}, 0x10001
        s_lshl_b32 {s(sT0)}, {s(sHG)}, 1
        s_add_u32 {s(sKH)}, {s(sKH)}, {s(sT0)}
        s_mul_i32 {s(sT0)}, {s(sKH)}, {768*1280}
        s_mul_i32 {s(sT1)}, {s(sW)}, {8*1280}
        s_add_u32 {s(sT0)}, {s(sT0)}, {s(sT1)}
        s_lshl_b32 {s(sT1)}, {s(sNH)}, 8
        s_add_u32 {s(sT1)}, {s(sT1)}, {s(sT0)}
        v_lshrrev_b32 {v(t0)}, 4, {v(vL)}
        v_mul_u32_u24 {v(t0)}, 1280, {v(t0)}
        v_and_b32 {v(t2)}, 15, {v(vL)}
        v_lshl_add_u32 {v(t0)}, {v(t2)}, 4, {v(t0)}
        v_add_u32 {v(t0)}, {s(sT1)}, {v(t0)}
        s_lshl_b32 {s(sT1)}, {s(sNH)}, 7
        s_add_u32 {s(sT1)}, {s(sT1)}, {s(sT0)}
        s_add_u32 {s(sT1)}, {s(sT1)}, 1024
        v_lshrrev_b32 {v(t1)}, 3, {v(vL)}
        v_mul_u32_u24 {v(t1)}, 1280, {v(t1)}
        v_and_b32 {v(t2)}, 7, {v(vL)}
        v_lshl_add_u32 {v(t1)}, {v(t2)}, 4, {v(t1)}
        v_add_u32 {v(t1)}, {s(sT1)}, {v(t1)}
        v_lshrrev_b32 {v(t2)}, 4, {v(vL)}
        v_lshlrev_b32 {v(t2)}, 3, {v(t2)}
        v_bfe_u32 {v(t3)}, {v(vL)}, 2, 2
        v_add_u32 {v(t2)}, {v(t2)}, {v(t3)}
        v_and_b32 {v(t3)}, 3, {v(vL)}
        v_lshlrev_b32 {v(t4)}, 7, {v(t2)}
        v_lshl_add_u32 {v(t4)}, {v(t3)}, 3, {v(t4)}
        s_lshl_b32 {s(sT0)}, {s(sW)}, 5
        v_add_u32 {v(t4)}, {s(sT0)}, {v(t4)}
        v_lshlrev_b32 {v(t2)}, 1, {v(t4)}
        v_add_u32 {v(t3)}, 40960, {v(t2)}
        v_add_u32 {v(t5)}, 40960, {v(t4)}
        v_lshlrev_b32 {v(vT16)}, 4, v0
        v_lshlrev_b32 {v(vRd)}, 4, {v(vL)}
        s_lshl_b32 {s(sT0)}, {s(sW)}, 14
        s_add_u32 {s(sT0)}, {s(sT0)}, {WL}
        v_add_u32 {v(vWr)}, {s(sT0)}, {v(vRd)}
        s_lshl_b32 {s(sIN)}, {s(sW)}, 11
        s_lshl_b32 {s(sOUT)}, {s(sW)}, 10""")

        def stage(ks):
            sl = (ks % 4) * 20480
            for part in range(2):
                for i in range(2):
                    k(f"""s_mov_b32 {s(sT0)}, {(32*ks+4*i)*1280+512*part}
                    s_add_u32 m0, {s(sIN)}, {sl+8192*part+1024*i}
                    buffer_load_dwordx4 {v(t0)}, {s(S_D,4)}, {s(sT0)} offen lds""")
            k(f"""s_mov_b32 {s(sT0)}, {32*ks*1280}
            s_add_u32 m0, {s(sOUT)}, {sl+16384}
            buffer_load_dwordx4 {v(t1)}, {s(S_D,4)}, {s(sT0)} offen lds""")
        for ks in range(3):
            stage(ks)
        self.arrive0(15, 1)
        for ks in range(24):
            k(f"s_waitcnt vmcnt({min(10, 5*(23-ks))})")
            self.barrier()
            if ks + 3 < 24:
                stage(ks + 3)
            if ks == 2:
                self.arrive0(0, 2)
            sl = (ks % 2) * 20480
            hi = (ks % 4) >= 2
            for t in range(4):
                for h in range(2):
                    k(f"ds_read_b64_tr_b16 {W(ks,t,2,2*h)}, {v(t3 if hi else t2)} offset:{sl+8192*(t>>1)+1024*h+8*(t&1)}")
            for h in range(2):
                k(f"ds_read_b64_tr_b16 {W(ks,4,2,2*h)}, {v(t5 if hi else t4)} offset:{sl+16384+512*h}")
            if ks < 16:
                k(f"ds_write_b128 {v(vWr)}, {W(ks,4)} offset:{ks*1024}")
        k(f"""v_and_b32 {v(t0)}, 15, {v(vL)}
        v_lshrrev_b32 {v(t1)}, 4, {v(vL)}
        v_lshlrev_b32 {v(vStC)}, 5, {v(t0)}
        v_lshl_add_u32 {v(vStC)}, {v(t1)}, 3, {v(vStC)}
        v_lshlrev_b32 {v(vSt)}, 1, {v(vStC)}
        s_lshl_b32 {s(sT0)}, {s(sNH)}, 2
        s_add_u32 {s(sT0)}, {s(sT0)}, {s(sW)}
        s_lshl_b32 {s(sT0)}, {s(sT0)}, 10
        v_add_u32 {v(vSt)}, {s(sT0)}, {v(vSt)}
        s_add_u32 {s(sT0)}, {s(sT0)}, 65536
        v_add_u32 {v(vStC)}, {s(sT0)}, {v(vStC)}
        v_min_u32 {v(vFl)}, 47, {v(vL)}
        s_and_b32 {s(sT0)}, {s(sKH)}, 1
        s_mul_i32 {s(sT0)}, {s(sT0)}, 48
        s_lshl_b32 {s(sT1)}, {s(sX)}, 7
        s_add_u32 {s(sT0)}, {s(sT0)}, {s(sT1)}
        v_add_u32 {v(vFl)}, {s(sT0)}, {v(vFl)}
        v_lshlrev_b32 {v(vFl)}, 7, {v(vFl)}
        v_add_u32 {v(vFl)}, {FLAGS}, {v(vFl)}
        s_mul_i32 {s(sIN)}, {s(sKH)}, 49152
        s_mul_i32 {s(sT0)}, {s(sL)}, {OXL}
        s_add_u32 {s(sIN)}, {s(sIN)}, {s(sT0)}
        s_add_u32 {s(sIN)}, {s(sIN)}, {OX}
        s_mul_i32 {s(sOB)}, {s(sKH)}, {PART}
        s_add_u32 {s(sOB)}, {s(sOB)}, {PA}
        s_lshr_b32 {s(sBUF)}, {s(sW)}, 1
        s_lshl_b32 {s(sBUF)}, {s(sBUF)}, 12
        s_and_b32 {s(sT0)}, {s(sW)}, 1
        s_lshl_b32 {s(sT0)}, {s(sT0)}, 10
        s_add_u32 {s(sBUF)}, {s(sBUF)}, {s(sT0)}
        v_add_u32 {v(vT16)}, {s(sBUF)}, {v(vRd)}
        s_mov_b32 {s(sPRE)}, 0""")
        self.pstamp(7)
        self.wait_grid()
        self.get_par()
        self.pstamp(8)
        fl_ld = f"buffer_load_dword {v(FL)}, {v(vFl)}, {WS}, 0 offen sc1"

        def dma(add, gap):
            out = []
            for i in range(12):
                off = (i % 6) * 8192 + (i // 6) * 2048
                out += [f"s_add_u32 m0, {s(sBUF)}, {off}", f"s_add_u32 {s(sT0)}, {s(sIN)}, {off}",
                        f"buffer_load_dwordx4 {v(vT16)}, {WS}, {s(sT0)} offen sc1 lds"] + gap
            ad = self.adv(sIN, 8*49152, add)
            return out + ad[:2] + [ad[2:4], ad[4], f"s_xor_b32 {s(sBUF)}, {s(sBUF)}, 49152"]

        def rd(n):
            mt, ks = divmod(n, 24)
            return [f"ds_read_b128 {v(FB+4*(n&3),4)}, {v(vRd)} offset:{(ks>>1)*4096+mt*2048+(ks&1)*1024}"] + \
                ([f"ds_read_b128 {W(ks,4)}, {v(vWr)} offset:{ks*1024}"] if ks < 16 else [])

        def steps(n0, n1):
            out = []
            for n in range(n0, n1):
                mt, ks = divmod(n, 24)
                r = (rd(n + 3) if n + 3 < 48 else []) + [None, None]
                nx = (n + 1) % 24
                for t in range(5):
                    acc = v(ACC + 20 * mt + 4 * t, 4)
                    out.append((f"v_mfma_f32_16x16x32_bf16 {acc}, {W(ks,t)}, {v(FB+4*(n&3),4)}, {acc if ks else 0}",
                                f"need {v(FB+4*((n+1)&3),4)}, {W(nx,4)}" if t == 4 and n + 1 < n1 else None, r[t] if t < 2 else None))
            return out

        def finish(mt):
            b = ACC + 20 * mt
            c = [f"v_cvt_pk_bf16_f32 {v(b+i)}, {v(b+2*i)}, {v(b+2*i+1)}" for i in range(10)]
            return [f"s_add_u32 {s(sO1)}, {s(sOUT)}, {16384*mt}", f"s_add_u32 {s(sO2)}, {s(sOUT)}, {16384*(2+mt)}"] + c[:4] + \
                [f"buffer_store_dwordx4 {v(b,4)}, {v(vSt)}, {WS}, {s(sO1)} offen sc1"] + c[4:8] + \
                [f"buffer_store_dwordx4 {v(b+4,4)}, {v(vSt)}, {WS}, {s(sO2)} offen sc1"] + c[8:] + \
                [f"buffer_store_dwordx2 {v(b+8,2)}, {v(vStC)}, {WS}, {s(sOUT)} offen offset:{mt*512} sc1"]
        flat = lambda L: [x for g in L for x in (g if isinstance(g, (list, tuple)) else [g]) if isinstance(x, str)]

        def flag(add):
            return [f"s_lshl_b32 {s(sT1)}, {s(sS)}, 1", f"s_add_u32 {s(sT1)}, {s(sT1)}, {add}", "s_waitcnt vmcnt(0)"] + self.put_flag(PK, s(sT1))
        self.sST = 32
        k(f"""L_Tseg:
        s_cmp_lg_u32 {s(sPRE)}, 0
        s_cbranch_scc1 L_Thave
        {fl_ld}""")
        k.many(flag(0) + [f"s_add_u32 {s(sT1)}, {s(sS)}, 1"])
        self.check_flags(FL, sT1, [fl_ld], 20)
        k.many(flat(dma(1, [])))
        k("s_waitcnt vmcnt(10)\nL_Thave:")
        self.stamp(0)
        k("s_waitcnt vmcnt(13)\ns_barrier")
        self.stamp(1)
        k.many(rd(0) + rd(1) + rd(2))
        q = self.near(sOUT, sOB) + [f"s_add_u32 {s(sOB)}, {s(sOB)}, {MB}"]
        pack(k, steps(0, 5), (q,))
        k("s_waitcnt vmcnt(6)\ns_barrier")
        pack(k, steps(5, o.tflag), ())
        k(f"s_cmp_eq_u32 {s(sPRE)}, 0\ns_cbranch_scc1 L_Tnofl")
        k.many(flag(0))
        k("L_Tnofl:")
        pack(k, steps(o.tflag, 21), ())
        k("s_waitcnt vmcnt(0)\ns_barrier")
        pack(k, steps(21, 25), ())
        self.stamp(2)
        q = finish(0)
        pack(k, steps(25, 24 + o.tf1), (q,))
        assert not q
        k.many(flag(1))
        q = [1 + 5 * (o.tsamp - o.tf1), fl_ld]
        pack(k, steps(24 + o.tf1, 24 + o.tpre), (q,))
        assert not q
        k(f"""s_add_u32 {s(sT1)}, {s(sS)}, 2
        v_cmp_gt_u32 vcc, {s(sT1)}, {v(FL)}
        s_mov_b32 {s(sPRE)}, 0
        s_cbranch_vccz L_Tpre""")
        pack(k, steps(24 + o.tpre, 48), ())
        k("L_Tend:")
        self.stamp(3)
        k(f"v_xor_b32 {v(vRd)}, 49152, {v(vRd)}")
        k.many(finish(1))
        self.stamp(4)
        self.stamps_out(5, FB)
        k(f"""s_add_u32 {s(sS)}, {s(sS)}, 1
        s_cmp_lt_u32 {s(sS)}, 64
        s_cbranch_scc1 L_Tseg""")
        k.many(flag(0))
        k(f"s_endpgm\nL_Tpre:\ns_mov_b32 {s(sPRE)}, 1")
        q = dma(2, [o.tgap] if o.tgap else [])
        pack(k, steps(24 + o.tpre, 48), (q,))
        k.many(flat(q) + ["s_branch L_Tend"])
        self.flush_ool()

    def role_B(self):
        k, o = self.k, self.o
        k("L_roleB:")
        if not self.role_gate('B'):
            return
        OB, MK, XT = 0, 5120, 8192
        V = Alloc(4, 256)
        S = Alloc(S_FREE, 102)
        vL = 1
        WS_, WO_ = V(80, 4), V(84, 4)
        ACC, FB, OF1 = V(36, 4), V(12, 4), V(4, 4)
        Q, KA, KB, VM, VE = (V(4, 4) for _ in range(5))
        OF2, vRdy, vRdr = V(2, 2), 3, vL
        vE, vOne, vT16, vXr0, vXr1, vL16, vMk0, vOw, vOw2, vSt, vStC, vFl, FL, vL8 = (V() for _ in range(14))
        sIN, sIB, sOB, sOUT, sBUF, sPRE, sB, sC, sO1, sO2, sPEND = (S() for _ in range(11))

        def W(m, ks, c=4, o=0):
            return a(80 * m + 4 * ks + o, c) if m < 3 else v(WS_ + 4 * ks + o, c)

        def WO(n, part, c, o=0):
            if part == 2:
                return a(240 + 2 * n + o, c) if n < 8 else v(WO_ + 80 + 2 * (n - 8) + o, c)
            return v(WO_ + 8 * n + 4 * part + o, c)
        srd(k, S_C, P_WQKV, 640 * 3840)
        srd(k, S_D, P_BWO, 640 * 1280)
        t0, t1, t2, t3, t4, t5, t6, t7 = range(ACC, ACC + 8)
        g_, rr, c_ = ACC + 8, ACC + 9, ACC + 10
        k(f"""v_and_b32 {v(vL)}, 63, v0
        s_lshl_b32 {s(sB)}, {s(sHG)}, 1
        s_and_b32 {s(sT0)}, {s(sT)}, 1
        s_add_u32 {s(sB)}, {s(sB)}, {s(sT0)}
        v_lshrrev_b32 {v(g_)}, 4, {v(vL)}
        v_bfe_u32 {v(rr)}, {v(vL)}, 2, 2
        v_and_b32 {v(c_)}, 3, {v(vL)}
        v_lshlrev_b32 {v(vL16)}, 4, {v(vL)}
        ; staging source: 2 rows per instruction, 30 pieces + 2 zero pieces per row
        v_and_b32 {v(t1)}, 31, {v(vL)}
        v_mul_u32_u24 {v(t2)}, 26, {v(t1)}
        v_lshrrev_b32 {v(t2)}, 8, {v(t2)}
        v_mul_u32_u24 {v(t0)}, {1280-160}, {v(t2)}
        v_lshl_add_u32 {v(t0)}, {v(t1)}, 4, {v(t0)}
        v_lshrrev_b32 {v(t2)}, 5, v0
        v_mul_u32_u24 {v(t2)}, 3840, {v(t2)}
        s_mul_i32 {s(sT0)}, {s(sB)}, 160
        v_add3_u32 {v(t0)}, {v(t0)}, {v(t2)}, {s(sT0)}
        v_mov_b32 {v(t2)}, {OOB:#x}
        v_cmp_gt_u32 vcc, 30, {v(t1)}
        v_cndmask_b32 {v(t0)}, {v(t2)}, {v(t0)}, vcc
        v_lshl_add_u32 {v(t1)}, {v(g_)}, 3, {v(rr)}
        v_lshlrev_b32 {v(t1)}, 9, {v(t1)}
        s_mul_i32 {s(sT0)}, {s(sW)}, 40
        v_mul_u32_u24 {v(t3)}, 160, {v(c_)}
        s_add_u32 {s(sT1)}, {s(sT0)}, 32
        v_mov_b32 {v(t4)}, {s(sT1)}
        v_cmp_gt_u32 vcc, 3, {v(c_)}
        v_cndmask_b32 {v(t4)}, 0, {v(t4)}, vcc
        v_add3_u32 {v(t3)}, {v(t3)}, {v(t4)}, {v(t1)}
        v_lshl_add_u32 {v(t1)}, {v(c_)}, 3, {v(t1)}
        v_add_u32 {v(t1)}, {s(sT0)}, {v(t1)}
        v_add_u32 {v(t2)}, 65536, {v(t1)}
        v_add_u32 {v(t4)}, 65536, {v(t3)}
        v_lshl_add_u32 {v(t5)}, {v(c_)}, 2, {v(rr)}
        v_lshl_add_u32 {v(t5)}, {v(g_)}, 4, {v(t5)}
        v_lshlrev_b32 {v(t5)}, 2, {v(t5)}
        s_lshl_b32 {s(sIN)}, {s(sW)}, 10""")

        def stage(ks):
            for i in range(4):
                k(f"""s_mov_b32 {s(sT0)}, {(32*ks+8*i)*3840}
                s_add_u32 m0, {s(sIN)}, {(ks%8)*16384+4096*i}
                buffer_load_dwordx4 {v(t0)}, {s(S_C,4)}, {s(sT0)} offen {NT}lds""")
        self.arrive0(0)
        for ks in range(7):
            stage(ks)
        for ks in range(20):
            k(f"s_waitcnt vmcnt({min(24, 4*(19-ks))})")
            self.barrier()
            if ks + 7 < 20:
                stage(ks + 7)
            sl = (ks % 4) * 16384
            hi = (ks % 8) >= 4
            for h in range(2):
                k(f"ds_read_b64_tr_b16 {v(FB+2*h,2)}, {v(t4 if hi else t3)} offset:{sl+2048*h}")
            for m in range(3):
                for h in range(2):
                    k(f"ds_read_b64_tr_b16 {W(m,ks,2,2*h)}, {v(t2 if hi else t1)} offset:{sl+2048*h+160*m}")
            for r in range(4):
                k(f"ds_bpermute_b32 {W(3,ks,1,r)}, {v(t5)}, {v(FB+r)}")
        self.barrier()
        lp = self.lab('stgb')
        k(f"""v_lshlrev_b32 {v(t0)}, 4, v0
        s_mul_i32 {s(sT0)}, {s(sB)}, {80*1280}
        s_add_u32 {s(sT1)}, {s(sT0)}, {80*1280}
        s_mov_b32 m0, {s(sIN)}
        {lp}:
        buffer_load_dwordx4 {v(t0)}, {s(S_D,4)}, {s(sT0)} offen {NT}lds
        s_add_u32 m0, m0, 4096
        s_add_u32 {s(sT0)}, {s(sT0)}, 4096
        s_cmp_lt_u32 {s(sT0)}, {s(sT1)}
        s_cbranch_scc1 {lp}
        v_lshl_add_u32 {v(t1)}, {v(g_)}, 2, {v(rr)}
        v_mul_u32_u24 {v(t1)}, 1280, {v(t1)}
        v_mul_u32_u24 {v(t3)}, 20, {v(rr)}
        v_add3_u32 {v(t3)}, {v(t3)}, {v(g_)}, 16
        v_mul_u32_u24 {v(t3)}, 1280, {v(t3)}
        s_lshl_b32 {s(sT0)}, {s(sW)}, 6
        v_lshl_add_u32 {v(t5)}, {v(c_)}, 3, {s(sT0)}
        v_add_u32 {v(t2)}, {v(t1)}, {v(t5)}
        v_add_u32 {v(t4)}, {v(t3)}, {v(t5)}
        v_lshl_add_u32 {v(t1)}, {v(t5)}, 1, {v(t1)}
        v_lshl_add_u32 {v(t3)}, {v(t5)}, 1, {v(t3)}
        v_add_u32 {v(t6)}, 51200, {v(t1)}
        v_add_u32 {v(t7)}, 51200, {v(t2)}
        s_waitcnt vmcnt(0)
        s_barrier""")
        for vi in range(2):
            for t in range(5):
                col = vi * 64 + 512 * (t >> 1) + 8 * (t & 1) if t < 4 else 1024 + vi * 32
                for kk in range(2):
                    for h in range(2):
                        base = ((t1, t6), (t2, t7))[t == 4][kk]
                        k(f"ds_read_b64_tr_b16 {WO(5*vi+t,kk,2,2*h)}, {v(base)} offset:{h*25600+col}")
                k(f"ds_read_b64_tr_b16 {WO(5*vi+t,2,2)}, {v(t4 if t == 4 else t3)} offset:{col}")
        self.barrier()
        j_, hf, u0, u1 = ACC + 11, ACC + 12, ACC + 13, ACC + 14
        k(f"""v_and_b32 {v(j_)}, 7, {v(vL)}
        v_bfe_u32 {v(hf)}, {v(vL)}, 3, 1
        v_lshlrev_b32 {v(vT16)}, 4, v0
        v_lshlrev_b32 {v(vL8)}, 3, {v(vL)}
        v_mul_u32_u24 {v(vXr0)}, 10240, {v(hf)}
        v_lshl_add_u32 {v(vXr0)}, {v(j_)}, 7, {v(vXr0)}
        v_xor_b32 {v(u0)}, {v(g_)}, {v(j_)}
        v_lshl_add_u32 {v(vXr0)}, {v(u0)}, 4, {v(vXr0)}
        v_xor_b32 {v(vXr1)}, 64, {v(vXr0)}
        v_and_b32 {v(t0)}, 15, {v(vL)}
        v_lshlrev_b32 {v(u0)}, 2, {v(g_)}
        v_cmp_eq_u32 vcc, {v(t0)}, {v(u0)}
        v_cndmask_b32 {v(vE)}, 0, 1.0, vcc
        v_mov_b32 {v(u1)}, 0x3f803f80
        v_cmp_eq_u32 vcc, 1, {v(c_)}
        v_cndmask_b32 {v(vOne)}, 0, {v(u1)}, vcc
        v_sub_u32 {v(u0)}, {v(t0)}, {v(u0)}
        v_mov_b32 {v(u1)}, 0xff800000""")
        for blk, add in ((0, 16), (1, 0)):
            for r in range(4):
                k(f"""v_add_u32 {v(t1)}, {add-r}, {v(u0)}
                v_and_b32 {v(t1)}, 0xfffffff1, {v(t1)}
                v_cmp_eq_u32 vcc, 0, {v(t1)}
                v_cndmask_b32 {v(FB+4*blk+r)}, {v(u1)}, 0, vcc""")
        for r in range(4):
            k(f"v_mov_b32 {v(FB+8+r)}, {v(u1)}")
        for r in range(Q, Q + 20):
            k(f"v_mov_b32 {v(r)}, 0")
        for blk in range(3):
            k(f"ds_write_b128 {v(vL16)}, {v(FB+4*blk,4)} offset:{MK+1024*blk}")
        k(f"""        v_add_u32 {v(vMk0)}, 2048, {v(vL16)}
        s_lshr_b32 {s(sT0)}, {s(sW)}, 1
        s_lshl_b32 {s(sT0)}, {s(sT0)}, 10
        s_and_b32 {s(sT1)}, {s(sW)}, 1
        s_lshl_b32 {s(sT1)}, {s(sT1)}, 3
        s_add_u32 {s(sT0)}, {s(sT0)}, {s(sT1)}
        v_add_u32 {v(vOw)}, {s(sT0)}, {v(vL16)}
        s_lshl_b32 {s(sT0)}, {s(sW)}, 1
        v_lshl_add_u32 {v(vOw2)}, {v(vL)}, 3, {s(sT0)}
        v_lshlrev_b32 {v(vStC)}, 5, {v(t0)}
        v_lshl_add_u32 {v(vStC)}, {v(g_)}, 3, {v(vStC)}
        v_lshlrev_b32 {v(vSt)}, 1, {v(vStC)}
        s_lshl_b32 {s(sT0)}, {s(sW)}, 11
        v_add_u32 {v(vSt)}, {s(sT0)}, {v(vSt)}
        s_add_u32 {s(sT0)}, {s(sT0)}, 65536
        v_add_u32 {v(vStC)}, {s(sT0)}, {v(vStC)}
        s_lshl_b32 {s(sIB)}, {s(sL)}, 23
        s_add_u32 {s(sIB)}, {s(sIB)}, {HB}
        s_mul_i32 {s(sOB)}, {s(sB)}, {PART}
        s_add_u32 {s(sOB)}, {s(sOB)}, {PB}
        s_lshl_b32 {s(sBUF)}, {s(sW)}, 10
        s_mov_b32 {s(sC)}, {f2u(20**-0.5*math.log2(math.e))}
        s_mov_b32 {s(sPRE)}, 0""")
        self.pstamp(7)
        self.wait_grid()
        self.get_par()
        self.flag_lines(vFl, u0, True, 30, 3)
        k.many(self.near(sIN, sIB))
        self.pstamp(8)
        k(f"""s_mov_b32 {s(sPEND)}, 0
        s_lshl_b32 {s(sT0)}, {s(sW)}, 2
        v_mov_b32 {v(vRdy)}, {s(sT0)}
        v_and_b32 {v(vRdr)}, 12, {v(vL)}""")
        fl_ld = f"buffer_load_dword {v(FL)}, {v(vFl)}, {WS}, 0 offen sc1"
        flat = lambda L: [x for g in L for x in (g if isinstance(g, (list, tuple)) else [g]) if isinstance(x, str)]
        flag = ["s_waitcnt vmcnt(0)"] + self.put_flag(2, s(sS))
        self.sST = 32

        def dma(mt, gap):
            out = []
            for i in range(5 * mt, 5 * mt + 5):
                out += [f"s_add_u32 m0, {s(sBUF)}, {XT+4096*i}", f"s_add_u32 {s(sT0)}, {s(sIN)}, {(i>>1)*16384+(i&1)*4096}",
                        f"buffer_load_dwordx4 {v(vT16)}, {WS}, {s(sT0)} offen sc1 lds"] + gap
            return out

        P = ACC + 16
        RDY = OB + 2560

        def rd(mt, ks):
            return f"ds_read_b128 {v(FB+4*(ks%3),4)}, {v(vXr1 if ks & 1 else vXr0)} offset:{XT+mt*20480+(ks>>1)*1024}"

        def steps(mt, k0, k1):
            out = []
            for ks in range(k0, k1):
                f = v(FB + 4 * (ks % 3), 4)
                for i, m in enumerate((3, 0, 1, 2)):
                    acc = v(ACC + 4 * m, 4)
                    x, y = (f, W(m, ks)) if m == 2 else (W(m, ks), f)
                    out.append((f"v_mfma_f32_16x16x32_bf16 {acc}, {x}, {y}, {acc if ks else 0}",
                                f"need {v(FB+4*((ks+1)%3),4)}" if i == 3 and ks + 1 < k1 else None, rd(mt, ks + 2) if i == 0 and ks + 2 < 20 else None))
            return out

        def owed():
            l = self.lab('owed')
            k.many([f"need {v(FL)}", f"s_cmp_eq_u32 {s(sPEND)}, 0", f"s_cbranch_scc1 {l}"] + flag + [f"s_mov_b32 {s(sPEND)}, 0", l + ':'])

        def fetch(mt, ahead, ms, queues=(), fill=0):
            pre, back = self.lab('pre'), self.lab('back')
            k(f"""s_add_u32 {s(sT1)}, {s(sS)}, {s(sPRE)}
            s_add_u32 {s(sT1)}, {s(sT1)}, {ahead+1}
            v_cmp_gt_u32 vcc, {s(sT1)}, {v(FL)}
            s_cbranch_vccz {pre}""")
            n0 = len(k.items)
            pack(k, ms, queues, fill=fill)
            body = [it.text for kind, it in k.items[n0:]]
            k(back + ':')
            q = [f"s_movk_i32 {s(sPRE)}, 1000"] + dma(mt, []) + ([f"s_add_u32 {s(sIB)}, {s(sIB)}, {HSEG}"] + self.near(sIN, sIB) if mt else [])
            out = []
            for x in body:
                out.append(x)
                if x.startswith('v_mfma'):
                    out += q[:3]
                    q = q[3:]
            self.ool.append([pre + ':'] + out + q + [f"s_branch {back}"])

        def attn1(mt):
            KC, cur, T = (KA, KB)[mt], 2 * (1 - mt), P + 8
            return f"""v_mfma_f32_16x16x4_f32 {v(T,4)}, {v(ACC+14)}, {v(vE)}, 0
            v_cvt_pk_bf16_f32 {v(Q+2)}, {v(ACC+12)}, 0
            v_cvt_pk_bf16_f32 {v(KC+2)}, {v(ACC+13)}, 0
            v_cvt_pk_bf16_f32 {v(Q)}, {v(ACC)}, {v(ACC+1)}
            v_cvt_pk_bf16_f32 {v(Q+1)}, {v(ACC+2)}, {v(ACC+3)}
            v_mov_b32 {v(Q+3)}, 0
            v_cvt_pk_bf16_f32 {v(KC)}, {v(ACC+4)}, {v(ACC+5)}
            v_cvt_pk_bf16_f32 {v(KC+1)}, {v(ACC+6)}, {v(ACC+7)}
            v_mfma_f32_16x16x32_bf16 {v(P+4*mt,4)}, {v((KB, KA)[mt],4)}, {v(Q,4)}, {v(P+4*mt,4)}
            v_cvt_pk_bf16_f32 {v(VM+cur)}, {v(ACC+8)}, {v(ACC+9)}
            v_cvt_pk_bf16_f32 {v(VM+cur+1)}, {v(ACC+10)}, {v(ACC+11)}
            v_mfma_f32_16x16x32_bf16 {v(P+4-4*mt,4)}, {v(KC,4)}, {v(Q,4)}, {v(P+4-4*mt,4)}"""

        def attn2(mt):
            cur, T, O = 2 * (1 - mt), P + 8, P + 12
            out = f"""v_mov_b32 {v(vMk0)}, {v(vL16)}
            v_cvt_pk_bf16_f32 {v(VE+cur)}, {v(T)}, {v(T+1)}
            v_cvt_pk_bf16_f32 {v(VE+cur+1)}, {v(T+2)}, {v(T+3)}
            v_or_b32 {v(VE+cur)}, {v(vOne)}, {v(VE+cur)}
            v_or_b32 {v(VE+cur+1)}, {v(vOne)}, {v(VE+cur+1)}
            v_max3_f32 {v(T)}, {v(P)}, {v(P+1)}, {v(P+2)}
            v_max3_f32 {v(T+1)}, {v(P+4)}, {v(P+5)}, {v(P+6)}
            v_max3_f32 {v(T)}, {v(T)}, {v(P+3)}, {v(P+7)}
            v_max_f32 {v(T)}, {v(T)}, {v(T+1)}
            v_mov_b32 {v(T+1)}, {v(T)}
            v_permlane16_swap_b32 {v(T)}, {v(T+1)}
            v_max_f32 {v(T)}, {v(T)}, {v(T+1)}
            v_mov_b32 {v(T+1)}, {v(T)}
            v_permlane32_swap_b32 {v(T)}, {v(T+1)}
            v_max_f32 {v(T)}, {v(T)}, {v(T+1)}
            v_mul_f32 {v(T)}, {s(sC)}, {v(T)}""".split('\n')
            out += [f"v_fma_f32 {v(P+r)}, {v(P+r)}, {s(sC)}, -{v(T)}" for r in range(8)] + [f"v_exp_f32 {v(P+r)}, {v(P+r)}" for r in range(8)] + \
                [f"v_cvt_pk_bf16_f32 {v(P+r)}, {v(P+2*r)}, {v(P+2*r+1)}" for r in range(4)]
            out += [[f"v_mfma_f32_16x16x32_bf16 {v(O+4,4)}, {v(VE,4)}, {v(P,4)}, 0", "s_nop 2", f"v_mfma_f32_16x16x32_bf16 {v(O,4)}, {v(VM,4)}, {v(P,4)}, 0"],
                    f"v_rcp_f32 {v(O+5)}, {v(O+5)}"] + [f"v_mul_f32 {v(O+r)}, {v(O+r)}, {v(O+5)}" for r in (4, 0, 1, 2, 3)]
            out += [f"v_cvt_pk_bf16_f32 {v(O+4)}, {v(O+4)}, {v(O+4)}", f"v_cvt_pk_bf16_f32 {v(O)}, {v(O)}, {v(O+1)}",
                    f"v_cvt_pk_bf16_f32 {v(O+1)}, {v(O+2)}, {v(O+3)}", f"ds_write_b16 {v(vOw2)}, {v(O+4)} offset:{OB+2048}",
                    f"ds_write_b64 {v(vOw)}, {v(O,2)} offset:{OB}", 5, "s_barrier",
                    f"ds_read_b64 {v(OF2,2)}, {v(vL8)} offset:{OB+2048}", f"ds_read_b128 {v(Q,4)}, {v(vL16)} offset:{OB}",
                    f"ds_read_b128 {v(OF1,4)}, {v(vL16)} offset:{OB+1024}"]
            return [x.strip() if isinstance(x, str) else x for x in out]

        def outp(mt, vi, ac):
            k16 = [(f"v_mfma_f32_16x16x16_bf16 {v(ac[t],4)}, {WO(5*vi+t,2,2)}, {v(OF2,2)}, 0", None, None) for t in range(5)]
            k32, tail = [], []
            for part, tiles in ((0, (0, 1)), (1, (2, 3)), (2, (4,))):
                k32 += [(f"v_mfma_f32_16x16x32_bf16 {v(ac[t],4)}, {WO(5*vi+t,kk,4)}, {v((Q, OF1)[kk],4)}, {v(ac[t],4)}", None, None)
                        for kk in range(2) for t in tiles]
                b = ac[tiles[0]]
                tail += [f"v_cvt_pk_bf16_f32 {v(b+i)}, {v(b+2*i)}, {v(b+2*i+1)}" for i in range(2 * len(tiles))]
                tail.append(f"buffer_store_dwordx4 {v(b,4)}, {v(vSt)}, {WS}, {s((sO1, sO2)[part])} offen offset:{1024*vi} sc1" if part < 2 else
                            f"buffer_store_dwordx2 {v(b,2)}, {v(vStC)}, {WS}, {s(sOUT)} offen offset:{1024*vi+512*mt} sc1")
            return k16, k32, tail

        def masks(mt):
            return [f"ds_read_b128 {v(P+4*mt,4)}, {v(vL16 if mt else vMk0)} offset:{MK}", f"ds_read_b128 {v(P+4-4*mt,4)}, {v(vL16)} offset:{MK+1024}"]
        done = [f"s_add_u32 {s(sS)}, {s(sS)}, 1", f"s_mov_b32 {s(sPEND)}, 1"]
        pool = [P + 4 * t for t in range(5)]

        for mt in range(2):
            k(f"""L_Bh{mt}:
            s_cmp_lg_u32 {s(sPRE)}, 0
            s_cbranch_scc1 L_Bhave{mt}
            {fl_ld}""")
            owed()
            k(f"s_add_u32 {s(sT1)}, {s(sS)}, 1")
            self.check_flags(FL, sT1, [fl_ld], 30)
            k.many(dma(mt, []) + ([f"s_add_u32 {s(sIB)}, {s(sIB)}, {HSEG}"] + self.near(sIN, sIB) if mt else []))
            k(f"s_waitcnt vmcnt(0)\nL_Bhave{mt}:")
            self.stamp(0)
            k(f"s_waitcnt vmcnt(6) lgkmcnt(0)\ns_barrier\ns_mov_b32 {s(sPRE)}, 0")
            self.stamp(1)
            k.many([rd(mt, 0), rd(mt, 1)])
            q = [1 + 4 * o.bsamp, fl_ld]
            pack(k, steps(mt, 0, o.bpre), (q,))
            owed()
            q = masks(mt)
            fetch(1 - mt, 1, steps(mt, o.bpre, 20), (q,), fill=3)
            k("s_waitcnt vmcnt(0)")
            k(f"L_Be{mt}:")
            self.tp(7)
            self.tp(0)
            k(f"""v_mov_b32 v2, {s(sPRE)}
            ds_write_b32 {v(vRdy)}, v2 offset:{RDY}
            {fl_ld}""")
            self.stamp(2)
            a1 = attn1(mt).split('\n')
            k.many(a1[:8] + ["s_barrier", f"ds_read_b32 v2, {v(vRdr)} offset:{RDY}"] + a1[8:])
            k.many((self.near(sOUT, sOB) + [f"s_add_u32 {s(sOB)}, {s(sOB)}, {MB}"] if mt == 0 else []) +
                   [f"s_add_u32 {s(sO1)}, {s(sOUT)}, {16384*mt}", f"s_add_u32 {s(sO2)}, {s(sOUT)}, {16384*(2+mt)}"])
            a2 = attn2(mt)
            k.many(a2[:5] + ["v_cmp_eq_u32 vcc, 0, v2", f"s_cbranch_vccz L_Bi{mt}"])
            k.many(flat(a2[5:]))
            self.stamp(3)
            owed()
            x0, x1 = outp(mt, 0, [ACC + 4 * t for t in range(4)] + [FB]), outp(mt, 1, pool)
            fetch(1 - mt, 1, x0[0] + x1[0])
            tail = x0[2] + x1[2]
            pack(k, x0[1] + x1[1], (tail,), ordered=True)
            k.many(flat(tail) + done)
            self.stamp(4)
            if mt:
                self.stamps_out(5, FB, half=True)
        k(f"s_cmp_lt_u32 {s(sS)}, 128\ns_cbranch_scc1 L_Bh0")
        k.many(flag)
        k("s_endpgm")
        for mt in range(2):
            k(f"L_Bi{mt}:\ns_mov_b32 {s(sPRE)}, 0")
            self.tp(1)
            k.many([rd(1 - mt, 0), rd(1 - mt, 1)])
            q = attn2(mt)[5:]
            k.many(q[:4])
            q = q[4:]
            pack(k, steps(1 - mt, 0, o.bi0), (q,))
            self.tp(2)
            owed()
            self.tp(3)
            fetch(mt, 2, steps(1 - mt, o.bi0, o.bi0 + 2), (q,))
            self.tp(4)
            pack(k, steps(1 - mt, o.bi0 + 2, o.bw0), (q,))
            k.many(flat(q))
            self.tp(5)
            x0, x1 = outp(mt, 0, pool), outp(mt, 1, pool)
            pack(k, x0[0] + steps(1 - mt, o.bw0, o.bw0 + 1) + x0[1] + steps(1 - mt, o.bw0 + 1, o.bw0 + 3), (x0[2],), ordered=True)
            k.many(x0[2])
            q = x1[2] + masks(1 - mt)
            pack(k, x1[0] + steps(1 - mt, o.bw0 + 3, o.bw0 + 4) + x1[1] + steps(1 - mt, o.bw0 + 4, 20), (q,), ordered=True, fill=3)
            self.tp(6)
            k.many(flat(q) + done + ["s_waitcnt vmcnt(6)", f"s_branch L_Be{1-mt}"])
        self.flush_ool()

    def role_R(self):
        k = self.k
        k("L_roleR:")
        if not self.role_gate('R'):
            return
        V = Alloc(4, 256)
        S = Alloc(S_FREE, 102)
        LD, LC, SEL, F, RES, HN, T = V(36, 4), V(12, 4), V(12, 4), V(12, 4), V(6, 2), V(6, 2), V(2, 2)
        vPa, vPc, vRa, vRc, vHa, vHc, vFl, FL = V(2), V(2), V(), V(), V(2), V(2), V(), V()
        sIN, sIB, sRES, sXD, sHB, sHD, sK, sLO, sHI, sHP = (S() for _ in range(10))
        self.arrive0(0)
        k(f"""s_and_b32 {s(sT0)}, {s(sT)}, 1
        s_lshl_b32 {s(sK)}, {s(sL)}, 1
        s_add_u32 {s(sK)}, {s(sK)}, {s(sT0)}
        s_cmp_eq_u32 {s(sK)}, 0
        s_cselect_b32 {s(S_B)}, {s(P_X)}, {s(P_WS)}
        s_cselect_b32 {s(S_B+1)}, {s(P_X+1)}, {s(P_WS+1)}
        s_cselect_b32 {s(S_B+2)}, {XSZ}, {s(S_WS+2)}
        s_mov_b32 {s(S_B+3)}, 0x20000
        s_cmp_eq_u32 {s(sK)}, 3
        s_cselect_b32 {s(S_C)}, {s(P_OUT)}, {s(P_WS)}
        s_cselect_b32 {s(S_C+1)}, {s(P_OUT+1)}, {s(P_WS+1)}
        s_cselect_b32 {s(S_C+2)}, {XSZ}, {s(S_WS+2)}
        s_mov_b32 {s(S_C+3)}, 0x20000
        s_mov_b32 {s(sRES)}, 0
        s_mov_b32 {s(sXD)}, {X1B}
        s_mov_b32 {s(sHB)}, {HB}""")
        for kk, (r, x, h) in ((1, (X1B, X2B, HA + 8*MB)), (2, (X2B, X1B + XSZ, HB + 8*MB)), (3, (X1B + XSZ, 0, 0))):
            k(f"""s_cmp_eq_u32 {s(sK)}, {kk}
            s_cselect_b32 {s(sRES)}, {r}, {s(sRES)}
            s_cselect_b32 {s(sXD)}, {x}, {s(sXD)}
            s_cselect_b32 {s(sHB)}, {h}, {s(sHB)}""")
        ln, u0, u1 = F, F + 1, F + 2
        k(f"""s_cmp_eq_u32 {s(sK)}, 1
        s_cselect_b32 {s(sHP)}, 0x2000, 0""")
        self.wait_grid()
        self.get_par(sHP)
        k(f"""s_xor_b32 {s(sHP)}, {s(sHP)}, {s(sPAR)}
        s_mov_b32 {s(sIB)}, {PB}
        s_bitcmp0_b32 {s(sK)}, 0
        s_cselect_b32 {s(sIB)}, {PA}, {s(sIB)}
        s_cselect_b32 {s(sT1)}, 24, 28
        s_cselect_b32 {s(sT2)}, 15, 7""")
        self.flag_lines(vFl, u0, True, s(sT1), s(sT2))
        k(f"""v_and_b32 {v(ln)}, 63, v0
        s_lshl_b32 {s(sT0)}, {s(sHG)}, 2
        s_add_u32 {s(sT0)}, {s(sT0)}, {s(sW)}
        s_mul_i32 {s(sT1)}, {s(sT0)}, 1280
        v_lshl_add_u32 {v(vRa)}, {v(ln)}, 4, {s(sT1)}
        v_lshl_add_u32 {v(vRc)}, {v(ln)}, 2, {s(sT1)}
        v_bfe_u32 {v(u0)}, {v(ln)}, 2, 3
        v_lshlrev_b32 {v(vPa)}, 10, {v(u0)}
        v_lshrrev_b32 {v(u0)}, 5, {v(ln)}
        v_lshl_add_u32 {v(vPa)}, {v(u0)}, 15, {v(vPa)}
        v_and_b32 {v(u0)}, 3, {v(ln)}
        v_lshl_add_u32 {v(vPa)}, {v(u0)}, 4, {v(vPa)}
        s_lshl_b32 {s(sT1)}, {s(sT0)}, 6
        v_add_u32 {v(vPa)}, {s(sT1)}, {v(vPa)}
        v_add_u32 {v(vPa+1)}, 16384, {v(vPa)}
        v_lshrrev_b32 {v(u0)}, 3, {v(ln)}
        v_lshlrev_b32 {v(vPc)}, 10, {v(u0)}
        v_and_b32 {v(u0)}, 7, {v(ln)}
        v_lshl_add_u32 {v(vPc)}, {v(u0)}, 2, {v(vPc)}
        s_lshl_b32 {s(sT1)}, {s(sT0)}, 5
        s_add_u32 {s(sT1)}, {s(sT1)}, 65536
        v_add_u32 {v(vPc)}, {s(sT1)}, {v(vPc)}
        v_add_u32 {v(vPc+1)}, 512, {v(vPc)}
        s_lshr_b32 {s(sT1)}, {s(sT0)}, 3
        s_mul_i32 {s(sT1)}, {s(sT1)}, 10
        s_and_b32 {s(sT0)}, {s(sT0)}, 7
        s_lshl_b32 {s(sT2)}, {s(sT0)}, 7""")
        for mt in range(2):
            k(f"""v_lshrrev_b32 {v(u0)}, 3, {v(ln)}
            v_add3_u32 {v(vHa+mt)}, {v(u0)}, {s(sT1)}, {20*mt}
            {self.tile_kb(vHa+mt, u0)}
            v_and_b32 {v(u0)}, 7, {v(ln)}
            v_xor_b32 {v(u0)}, {s(sT0)}, {v(u0)}
            v_lshl_add_u32 {v(u0)}, {v(u0)}, 4, {s(sT2)}
            v_add_u32 {v(vHa+mt)}, {v(vHa+mt)}, {v(u0)}
            v_lshrrev_b32 {v(u0)}, 5, {v(ln)}
            v_add3_u32 {v(vHc+mt)}, {v(u0)}, {s(sT1)}, {20*mt+8}
            {self.tile_kb(vHc+mt, u0)}
            v_bfe_u32 {v(u0)}, {v(ln)}, 2, 3
            v_xor_b32 {v(u0)}, {s(sT0)}, {v(u0)}
            v_lshl_add_u32 {v(u0)}, {v(u0)}, 4, {s(sT2)}
            v_and_b32 {v(u1)}, 3, {v(ln)}
            v_lshl_add_u32 {v(u0)}, {v(u1)}, 2, {v(u0)}
            v_add_u32 {v(vHc+mt)}, {v(vHc+mt)}, {v(u0)}""")
        k(f"""v_bfe_u32 {v(u0)}, {v(ln)}, 2, 2
        v_lshrrev_b32 {v(u1)}, 4, {v(ln)}
        v_cmp_eq_u32 vcc, {v(u0)}, {v(u1)}
        v_and_b32 {v(u0)}, 1, {v(ln)}
        v_lshlrev_b32 {v(u0)}, 4, {v(u0)}
        v_mov_b32 {v(u1)}, 0x3f80
        v_lshlrev_b32 {v(u1)}, {v(u0)}, {v(u1)}
        v_cndmask_b32 {v(u1)}, 0, {v(u1)}, vcc
        v_and_b32 {v(u0)}, 2, {v(ln)}
        v_cmp_eq_u32 vcc, 0, {v(u0)}
        v_cndmask_b32 {v(SEL)}, 0, {v(u1)}, vcc
        v_xor_b32 {v(SEL+1)}, {v(SEL)}, {v(u1)}
        v_mov_b32 {v(SEL+6)}, {v(SEL)}
        v_mov_b32 {v(SEL+7)}, {v(SEL+1)}
        v_mov_b32 {v(FL)}, 0""")
        for r in (SEL + 2, SEL + 3, SEL + 4, SEL + 5, LC + 9, LC + 10, LC + 11):
            k(f"v_mov_b32 {v(r)}, 0")
        for r in range(4):
            k(f"v_mov_b32 {v(SEL+8+r)}, {v(SEL)}")
        fl_ld = f"buffer_load_dword {v(FL)}, {v(vFl)}, {WS}, 0 offen sc1"
        flag = ["s_waitcnt vmcnt(0)"] + self.put_flag(T, s(sS))
        self.sST = 32
        def loads(mt):
            out = self.near(sIN, sIB)
            for p in range(8):
                out += [f"buffer_load_dwordx4 {v(LD+4*p,4)}, {v(vPa+mt)}, {WS}, {s(sIN)} offen sc1",
                        f"buffer_load_dword {v(LC+p)}, {v(vPc+mt)}, {WS}, {s(sIN)} offen sc1", f"s_add_u32 {s(sIN)}, {s(sIN)}, {PART}"]
            return out + [f"buffer_load_dwordx4 {v(LD+32,4)}, {v(vRa)}, {s(S_B,4)}, {s(sRES)} offen sc1",
                          f"buffer_load_dword {v(LC+8)}, {v(vRc)}, {s(S_B,4)}, {s(sRES)} offen offset:1024 sc1",
                          f"s_add_u32 {s(sRES)}, {s(sRES)}, {TILE//2}"] + ([f"s_add_u32 {s(sIB)}, {s(sIB)}, {MB}"] if mt else [])
        k("L_Rseg:")
        for mt in range(2):
            k(f"""s_add_u32 {s(sT1)}, {s(sS)}, 1
            v_cmp_gt_u32 vcc, {s(sT1)}, {v(FL)}
            s_cbranch_vccz L_Rpre{mt}
            {fl_ld}""")
            k.many(flag)
            self.check_flags(FL, sT1, [fl_ld], 40)
            tot = []
            for p in range(9):
                tot += [f"v_mfma_f32_16x16x32_bf16 {v(F+4*hh,4)}, {v(SEL+4*hh,4)}, {v(LD+4*p,4)}, {v(F+4*hh,4) if p else 0}" for hh in range(2)]
                if p % 4 == 3 or p == 8:
                    tot.append(f"v_mfma_f32_16x16x32_bf16 {v(F+8,4)}, {v(SEL+8,4)}, {v(LC+4*(p//4),4)}, {v(F+8,4) if p > 3 else 0}")
            self.stamp(0)
            k.many(loads(mt) + tot + [f"L_Rsum{mt}:"])
            self.ool.append([f"L_Rpre{mt}:"] + loads(mt) + ["s_waitcnt vmcnt(18)"] + flag[1:] + tot + [f"s_branch L_Rsum{mt}"])
            self.ool.append([f"L_Rlast{mt}:", f"need {v(FL)}", f"s_branch L_Rnext{mt}"])
            k(fl_ld)
            k.many(self.near(sHD, sHB, sHP))
            self.stamp(1)
            for i in range(5):
                k(f"v_cvt_pk_bf16_f32 {v(RES+i)}, {v(F+2*i)}, {v(F+2*i+1)}")
            k(f"""buffer_store_dwordx4 {v(RES,4)}, {v(vRa)}, {s(S_C,4)}, {s(sXD)} offen sc1
            buffer_store_dword {v(RES+4)}, {v(vRc)}, {s(S_C,4)}, {s(sXD)} offen offset:1024 sc1
            s_add_u32 {s(sXD)}, {s(sXD)}, {TILE//2}
            s_cmp_eq_u32 {s(sK)}, 3
            s_cbranch_scc1 L_Rlast{mt}""")
            self.stamp(2)
            self.layernorm(RES, F, T, 5, HN)
            k(f"""need {v(FL)}
            buffer_store_dwordx4 {v(HN,4)}, {v(vHa+mt)}, {WS}, {s(sHD)} offen sc1
            buffer_store_dword {v(HN+4)}, {v(vHc+mt)}, {WS}, {s(sHD)} offen sc1
            L_Rnext{mt}:""")
            self.stamp(3)
            if mt:
                self.stamps_out(4, F, half=True)
            k(f"s_add_u32 {s(sS)}, {s(sS)}, 1")
        k(f"""s_add_u32 {s(sHB)}, {s(sHB)}, {HSEG}
        s_cmp_lt_u32 {s(sS)}, 128
        s_cbranch_scc1 L_Rseg""")
        k.many(flag)
        self.pstamp(11)
        k("s_endpgm")
        self.flush_ool()

    def build(self):
        self.prologue()
        self.role_C()
        self.role_T()
        self.role_B()
        self.role_R()
        self.flush_ool()
        body = self.k.text()
        if self.o.cut:
            import re
            def cut(body, a, b, pat):
                i, j = body.index(a), (body.index(b) if b else len(body))
                return body[:i] + re.sub(pat, '', body[i:j]) + body[j:]
            st, ld, dm = r'    buffer_store_dwordx[24] .*sc1\n', r'    buffer_load_dwordx[24] v\[.*sc1\n', r'    buffer_load_dwordx4 .* lds\n'
            for c in self.o.cut:
                body = cut(body, *{'1': ('L_Tseg:', 'L_roleB:', st), '2': ('L_Bh0:', 'L_roleR:', st), '3': ('L_Rseg:', None, ld),
                                   '4': ('L_Rseg:', None, st), '5': ('L_Bh0:', 'L_roleR:', dm), '6': ('L_Tseg:', 'L_roleB:', dm),
                                   '7': ('L_Ctop3:', 'L_roleT:', dm)}[c])
        ref = open(os.path.join(os.path.dirname(os.path.abspath(__file__)), '..', NAME + '.s.ref')).read()
        head = ref[:ref.index('; Override launch')]
        return (head + "; Generated by gen/gen.py (persistent role-specialised kernel; one workgroup per CU).\n"
                "; @launch grid=(256,1,1) block=(256,1,1) lds=163840\n"
                '.amdgcn_target "amdgcn-amd-amdhsa--gfx950"\n.text\n'
                f".globl {NAME}_kernel\n.p2align 8\n.type {NAME}_kernel,@function\n{NAME}_kernel:\n" + body +
                f""".section .rodata,"a"
.p2align 6
.amdhsa_kernel {NAME}_kernel
  .amdhsa_next_free_vgpr 512
  .amdhsa_next_free_sgpr 102
  .amdhsa_accum_offset 256
  .amdhsa_group_segment_fixed_size 0
  .amdhsa_kernarg_size 104
  .amdhsa_user_sgpr_count 2
  .amdhsa_user_sgpr_kernarg_segment_ptr 1
  .amdhsa_system_sgpr_workgroup_id_x 1
  .amdhsa_float_denorm_mode_32 3
.end_amdhsa_kernel
""")


if __name__ == '__main__':
    o = Opt()
    out = f'/code/{NAME}.s'
    for arg in sys.argv[1:]:
        key, val = arg.split('=')
        if key == 'out':
            out = val
        else:
            setattr(o, key, type(getattr(o, key))(int(val)) if not isinstance(getattr(o, key), str) else val)
    NT = 'nt ' if o.nt else ''
    g = Gen(o)
    txt = g.build()
    open(out, 'w').write(txt)
    print(out, len(txt), 'bytes', g.k.n_ins, 'instructions', g.k.n_nop, 'nops')
```

```python
import sys, os, math, struct
from asmdsl import *

NAME = 'interleave_layers__memory_aug_recurrent_mem_tr__sliding_local_dilated__prompt'
MB = 1 << 20
RING, FLAGS, DBG, X3R = 0, 8 * MB, 9 * MB, 14 * MB
HA, HB, X1B, X2B = 16 * MB, 32 * MB, 48 * MB, 54 * MB
OX, PA, PB = 58 * MB, 72 * MB, 136 * MB
HSEG, OXL, PART = 128 * 1024, 16 * 8 * 49152, 5 * 16384
FFAR = X3R + 0x20000
XSZ = 2048 * 1280
TILE = 32 * 1280
SLOT = 256 * 1024
R_X1M, R_X1X, R_X2, R_AG, R_X3 = 0, 30720, 153600, 178176, 188416
OOB = 0x80000000


def f2u(x):
    return '0x%08x' % struct.unpack('<I', struct.pack('<f', x))[0]


class Opt:
    stamps = 0
    roles = 'CTBR'
    layers = 2
    fsleep = 2
    warm = 0
    nt = 1
    carr = 4
    gpos = 7
    nv0, nv2, nm0, sxx = 1, 4, 4, 0
    nox = 0
    ad3, adn, rest0, d3 = 1, 0, 0, 0
    agm, x2m = 2, 0
    hm = 0
    fine, b5, n1d, dsp, x1p = 1, 1, 1, 2, 0
    aga, agd, x1a, x1d, x3a, x3d = 2, 6, 1, 4, 2, 13
    cut = ''
    free = 0
    sel = '0,1,2,3,4,5,6,7,8,9,10,11,12'
    severy = 1
    tflag, tf1, tsamp, tpre, tgap = 8, 11, 15, 19, 0
    bsamp, bpre, bw0, bi0 = 2, 10, 11, 6
    dpos = '340003'
    nv1, n1a, n1b, n1c, x2i, x2e, x2g, n2a, n2b, n3a, n3b, n3c, n3d, n3e, n4, n5, n6, fgap, xpub = 6, 6, 21, 1, 13, 2, 2, 25, 2, 4, 4, 9, 14, 14, 12, 0, 0, 8, 4
    nowait = 0
    wcode, wring = 1, 1
    oxr = 4


S_WS, S_DBG, S_A, S_B, S_C, S_D, S_E = 4, 8, 12, 16, 20, 24, 28
P0 = 32
P_X, P_MEM0, P_WQ, P_WK, P_WV, P_WO, P_WQKV, P_BWO, P_OUT, P_DBG, P_WS = (P0 + 2 * i for i in (0, 1, 2, 3, 4, 5, 8, 9, 10, 11, 12))
sX, sT, sW, sTO, sS, sFLAG, sT0, sT1, sT2, sT3, sL, sHG = range(58, 70)
sFLOC, sPAR = 3, 1
S_FREE = 70
WS, DBGS = s(S_WS, 4), s(S_DBG, 4)


def srd(k, dst, ptr, nbytes):
    k(f"""s_mov_b32 {s(dst)}, {s(ptr)}
    s_mov_b32 {s(dst+1)}, {s(ptr+1)}
    s_mov_b32 {s(dst+2)}, {nbytes}
    s_mov_b32 {s(dst+3)}, 0x20000""")


class Gen:
    def __init__(self, opt):
        self.o = opt
        self.k = Asm()
        self.ool = []
        self.nlab = 0

    def lab(self, p):
        self.nlab += 1
        return f'L{p}_{self.nlab}'

    def bad_tag(self, r, tmp, tag):
        c = [f"v_bitop3_b32 {v(tmp)}, {v(r[0])}, {v(r[1])}, {s(tag)} bitop3:0x7e"]
        if len(r) == 4:
            c += [f"v_bitop3_b32 {v(tmp+1)}, {v(r[2])}, {v(r[3])}, {s(tag)} bitop3:0x7e",
                  f"v_bitop3_b32 {v(tmp)}, {v(tmp)}, {v(tmp+1)}, 1 bitop3:0xa8"]
        else:
            c += [f"v_bitop3_b32 {v(tmp)}, {v(tmp)}, {v(r[2])}, {s(tag)} bitop3:0xf6",
                  f"v_and_b32 {v(tmp)}, {v(self.vTagM)}, {v(tmp)}"]
        return c + [f"v_cmp_eq_u32 vcc, {2 if self.o.free else 1}, {v(tmp)}"]

    def bad_empty(self, regs, tmp):
        regs = list(regs)
        c = [f"v_max3_u32 {v(tmp)}, {v(regs[0])}, {v(regs[1])}, {v(regs[2])}"]
        rest = regs[3:]
        while len(rest) >= 2:
            c.append(f"v_max3_u32 {v(tmp)}, {v(tmp)}, {v(rest[0])}, {v(rest[1])}")
            rest = rest[2:]
        if rest:
            c.append(f"v_max_u32 {v(tmp)}, {v(tmp)}, {v(rest[0])}")
        return c + [f"v_cmp_{'lt' if self.o.free else 'eq'}_u32 vcc, -1, {v(tmp)}"]

    def poll(self, sets, ld, bad, use, code, early=False):
        ok, n = self.lab('ok'), len(sets)
        rty = [self.lab('rty') for _ in sets]
        chk = lambda i: bad(sets[i]) + [f"s_cbranch_vccnz {rty[i]}"]
        self.k.many((use(sets[0]) + chk(0) if early else chk(0) + use(sets[0])) + [ok + ':'])
        for i in range(n):
            j = (i + 1) % n
            self.ool.append([rty[i] + ':'] + ld(sets[i]) + self.timeout(code) + chk(j) + use(sets[j]) + [f's_branch {ok}'])

    def poll_lanes(self, loads, tmp, lim, masks, use, code, early=False):
        ok, rty = self.lab('ok'), self.lab('rty')
        allr = [r for _, rs in loads for r in rs]
        first = self.bad_empty(allr, tmp)[:-1] + [f"v_cmp_lt_u32 vcc, {lim}, {v(tmp)}", f"s_cbranch_vccnz {rty}"]
        self.k.many((use + first if early else first + use) + [ok + ':'])
        test = []
        for i, (_, rs) in enumerate(loads):
            if len(rs) > 1:
                test.append(f"v_max_u32 {v(tmp)}, {v(rs[0])}, {v(rs[1])}")
            test.append(f"v_cmp_lt_u32 {s(masks+2*i,2)}, {lim}, {v(tmp if len(rs) > 1 else rs[0])}")
        again = [x for i, (l, _) in enumerate(loads) for x in (f"s_mov_b64 exec, {s(masks+2*i,2)}", l)] + ["s_mov_b64 exec, -1"]
        self.ool.append([rty + ':'] + test + again + self.timeout(code) + ["s_waitcnt vmcnt(0)"] + first + use + [f"s_branch {ok}"])

    def timeout(self, code):
        return [f"s_sub_u32 {s(sTO)}, {s(sTO)}, 1", f"s_mov_b32 {s(sT3)}, {code}", f"s_cbranch_scc1 L_fail"]

    def check_flags(self, reg, want, reissue, code, notready=None):
        k = self.k
        chk, rty = self.lab('fchk'), self.lab('frty')
        k(f"{chk}:\nv_cmp_gt_u32 vcc, {s(want)}, {v(reg)}")
        if notready:
            k(f"s_cbranch_vccnz {notready}")
        else:
            k(f"s_cbranch_vccnz {rty}")
            self.ool.append([rty + ':', f's_sleep {self.o.fsleep}'] + list(reissue) + self.timeout(code) + ['s_waitcnt vmcnt(0)', f's_branch {chk}'])

    def flag_lines(self, dst, tmp, own_layer, ticket, mask):
        k = self.k
        k(f"""v_and_b32 {v(dst)}, {mask}, v0
        v_mov_b32 {v(tmp)}, {ticket}
        v_lshl_add_u32 {v(dst)}, {v(tmp)}, 2, {v(dst)}
        v_lshlrev_b32 {v(dst)}, 7, {v(dst)}
        v_bfe_u32 {v(tmp)}, v0, 4, 2
        v_cmp_eq_u32 vcc, {s(sHG)}, {v(tmp)}
        s_xor_b32 {s(sT0)}, {s(sPAR)}, 0x2000
        s_add_u32 {s(sT0)}, {s(sT0)}, {FFAR-24*512}
        v_lshl_add_u32 {v(tmp)}, {v(tmp)}, 18, {s(sT0)}""")
        if own_layer:
            k(f"""s_lshl_b32 {s(sT0)}, {s(sL)}, 20
            v_add_u32 {v(tmp)}, {s(sT0)}, {v(tmp)}
            s_lshl_b32 {s(sT0)}, {s(sX)}, 14
            s_add_u32 {s(sT0)}, {s(sT0)}, {FLAGS}
            v_mov_b32 v2, {s(sT0)}
            v_cndmask_b32 {v(tmp)}, {v(tmp)}, v2, vcc""")
        k(f"v_add_u32 {v(dst)}, {v(dst)}, {v(tmp)}")

    def take_par(self, r):
        self.k(f"""v_readfirstlane_b32 {s(sPAR)}, {v(r)}
        s_cmp_gt_u32 {s(sPAR)}, 17
        s_cselect_b32 {s(sPAR)}, 1, 0
        s_xor_b32 {s(sPAR)}, {s(sPAR)}, {s(sL)}
        s_lshl_b32 {s(sPAR)}, {s(sPAR)}, 13""")

    def get_par(self, flip=None):
        k = self.k
        chk, rty = self.lab('pchk'), self.lab('prty')
        ld = f"buffer_load_dword v2, off, {DBGS}, 0 offset:{self.D_PAR} sc1"
        k(f"{ld}\n{chk}:\nv_cmp_eq_u32 vcc, 0, v2\ns_cbranch_vccnz {rty}")
        self.ool.append([rty + ':', 's_sleep 16', ld] + self.timeout(16) + [f's_branch {chk}'])
        self.take_par(2)
        k(f"""s_lshl_b32 {s(sFLAG)}, {s(sX)}, 18
        s_and_b32 {s(sT0)}, {s(sFLOC)}, 0xfff
        s_add_u32 {s(sFLAG)}, {s(sFLAG)}, {s(sT0)}
        s_add_u32 {s(sFLAG)}, {s(sFLAG)}, {FFAR+0x2000}
        s_xor_b32 {s(sFLAG)}, {s(sFLAG)}, {s(sPAR)}""")
        if flip is not None:
            k(f"s_xor_b32 {s(sFLAG)}, {s(sFLAG)}, {s(flip)}")

    def near(self, dst, base, par=sPAR, mask='0x2000'):
        return [f"s_lshr_b32 {s(dst)}, {s(base)}, 8", f"s_xor_b32 {s(dst)}, {s(dst)}, {s(par)}", f"s_and_b32 {s(dst)}, {s(dst)}, {mask}",
                f"s_or_b32 {s(dst)}, {s(dst)}, {s(base)}"]

    def tile_kb(self, n, t):
        return f"v_lshrrev_b32 {v(t)}, 3, {v(n)}\nv_lshlrev_b32 {v(n)}, 10, {v(n)}\nv_lshl_add_u32 {v(n)}, {v(t)}, 13, {v(n)}"

    def flush_ool(self):
        for b in self.ool:
            self.k.many(b)
        self.ool = []

    def barrier(self):
        self.k("s_waitcnt lgkmcnt(0)\ns_barrier")

    def layernorm(self, pk, f, t, n=10, dst=None):
        k = self.k
        for i in range(n):
            k(f"v_lshlrev_b32 {v(f+2*i)}, 16, {v(pk+i)}\nv_and_b32 {v(f+2*i+1)}, 0xffff0000, {v(pk+i)}")
        k(f"v_pk_add_f32 {v(t,2)}, {v(f,2)}, {v(f+2,2)}")
        for i in range(2, n):
            k(f"v_pk_add_f32 {v(t,2)}, {v(t,2)}, {v(f+2*i,2)}")
        self.rowsum(t, n)
        k(f"v_mul_f32 {v(t)}, {f2u(-1/640)}, {v(t)}")
        for i in range(n):
            k(f"v_pk_add_f32 {v(f+2*i,2)}, {v(f+2*i,2)}, {v(t,2)} op_sel_hi:[1,0]")
        k(f"v_pk_mul_f32 {v(t,2)}, {v(f,2)}, {v(f,2)}")
        for i in range(1, n):
            k(f"v_pk_fma_f32 {v(t,2)}, {v(f+2*i,2)}, {v(f+2*i,2)}, {v(t,2)}")
        self.rowsum(t, n)
        k(f"""v_mov_b32 {v(t+1)}, {f2u(1e-5)}
        v_fmac_f32 {v(t+1)}, {f2u(1/640)}, {v(t)}
        v_rsq_f32 {v(t)}, {v(t+1)}""")
        for i in range(n):
            k(f"v_pk_mul_f32 {v(f+2*i,2)}, {v(f+2*i,2)}, {v(t,2)} op_sel_hi:[1,0]")
        for i in range(n):
            k(f"v_cvt_pk_bf16_f32 {v((dst or pk)+i)}, {v(f+2*i)}, {v(f+2*i+1)}")

    def rowsum(self, x, n):
        k, t = self.k, x + 1
        k(f"v_add_f32 {v(x)}, {v(x)}, {v(t)}")
        for m in ('quad_perm:[1,0,3,2]', 'quad_perm:[2,3,0,1]', 'row_half_mirror', 'row_mirror'):
            k(f"v_add_f32_dpp {v(x)}, {v(x)}, {v(x)} {m} row_mask:0xf bank_mask:0xf")
        for w in (16, 32)[:1 if n == 10 else 2]:
            k(f"v_mov_b32 {v(t)}, {v(x)}\nv_permlane{w}_swap_b32 {v(x)}, {v(t)}\nv_add_f32 {v(x)}, {v(x)}, {v(t)}")

    D_ARR, D_LOAD, D_VOTE, D_FAIL, D_GO, D_HALF, D_PAR = 4, 68, 72, 40, 132, 136, 140

    def count(self, ctr, marks, wave=0, r=2, part=3):
        k = self.k
        skip = self.lab('cnt')
        k(f"""s_cmp_lg_u32 {s(sW)}, {wave}
        s_cbranch_scc1 {skip}
        s_mov_b64 exec, 1""")
        if part & 1:
            k(f"v_mov_b32 {v(r)}, 1\nbuffer_atomic_add {v(r)}, off, {DBGS}, 0 offset:{ctr} sc0")
        if part & 2:
            k(f"v_mov_b32 {v(r+1)}, {OOB:#x}")
            for n, word in marks:
                k(f"v_cmp_ne_u32 vcc, {n-1}, {v(r)}\nv_cndmask_b32 {v(r+1)}, {word-128}, {v(r+1)}, vcc")
            k(f"buffer_store_dword {v(r)}, {v(r+1)}, {DBGS}, 0 offen offset:128 sc1")
        k(f"s_mov_b64 exec, -1\n{skip}:")

    def await_word(self, word, code, sleep=16):
        k = self.k
        chk, rty, skip = self.lab('gchk'), self.lab('grty'), self.lab('gskip')
        ld = f"buffer_load_dword v2, off, {DBGS}, 0 offset:{word} sc1"
        k(f"""s_cmp_lg_u32 {s(sW)}, 0
        s_cbranch_scc1 {skip}
        {ld}
        {chk}:
        v_cmp_eq_u32 vcc, 0, v2
        s_cbranch_vccnz {rty}
        {skip}:""")
        self.barrier()
        self.ool.append([rty + ':', f's_sleep {sleep}', ld] + self.timeout(code) + [f's_branch {chk}'])

    def arrive(self, younger=0, r=2, part=3):
        if part & 1:
            self.k(f"s_waitcnt vmcnt({younger})\ns_barrier")
        self.count(self.D_ARR, [(256, self.D_GO)], 0, r, part)

    def wait_grid(self):
        self.await_word(self.D_GO, 1)

    def hold(self):
        self.await_word(self.D_HALF, 4)

    def warm(self):
        k = self.k
        skip = self.lab('nowarm')
        k(f"""s_cmp_eq_u32 {s(sL)}, 0
        s_cbranch_scc1 {skip}""")
        if self.o.warm:
            k(f"""s_lshl_b32 {s(sT0)}, {s(sHG)}, 5
            s_add_u32 {s(sT0)}, {s(sT0)}, {s(sT)}
            s_lshl_b32 {s(sT0)}, {s(sT0)}, 12
            v_lshl_add_u32 v3, v0, 4, {s(sT0)}""")
            for ptr, size in ((P_WQ, 640 * 12288), (P_WK, 640 * 12288), (P_WV, 640 * 12288), (P_WO, 6144 * 1280), (P_WQKV, 640 * 3840), (P_BWO, 640 * 1280)):
                lp = self.lab('warm')
                srd(k, S_E, ptr, size)
                k(f"""s_mov_b32 {s(sT0)}, 0
                {lp}:
                buffer_load_dwordx4 a[252:255], v3, {s(S_E,4)}, {s(sT0)} offen
                s_add_u32 {s(sT0)}, {s(sT0)}, {128*4096}
                s_cmp_lt_u32 {s(sT0)}, {size}
                s_cbranch_scc1 {lp}""")
                if ptr == P_WQ:
                    self.arrive(15)
            k("s_waitcnt vmcnt(0)")
        else:
            self.arrive(0)
            self.probe()
            self.hold()
        k(skip + ':')

    def arrive0(self, younger, part=3):
        skip = self.lab('arr0')
        self.k(f"s_cmp_lg_u32 {s(sL)}, 0\ns_cbranch_scc1 {skip}")
        self.arrive(younger, 2, part)
        self.k(skip + ':')

    def loaded(self, r=2, part=3):
        self.count(self.D_LOAD, [(96, self.D_HALF)], 1, r, part)

    def probe(self):
        k = self.k
        lp, end = self.lab('probe'), self.lab('noprobe')
        m0, m1 = S_FREE, S_FREE + 1
        k(f"""s_lshl_b32 {s(sT0)}, {s(sW)}, 5
        s_add_u32 {s(sT0)}, {s(sT0)}, {s(sT)}
        s_lshr_b32 {s(sT0)}, {s(sT0)}, 3
        s_cmp_lg_u32 {s(sT0)}, 3
        s_cbranch_scc1 {end}
        s_lshl_b32 {s(sT0)}, {s(sHG)}, 3
        s_and_b32 {s(sT1)}, {s(sT)}, 7
        s_add_u32 {s(sT0)}, {s(sT0)}, {s(sT1)}
        s_lshl_b32 {s(sT0)}, {s(sT0)}, 7
        s_add_u32 {s(sT0)}, {s(sT0)}, {X3R+0x2c000}
        s_add_u32 {s(sT2)}, {s(sT0)}, {2*0x10000}
        v_lshlrev_b32 v3, 4, v0
        s_mov_b64 exec, 0xff
        s_mov_b32 {s(m0)}, -1
        s_mov_b32 {s(m1)}, -1
        {lp}:
        buffer_store_dwordx4 v[8:11], v3, {WS}, {s(sT0)} offen sc1
        s_mov_b32 s0, 0
        {lp}w:
        s_add_u32 s0, s0, 1
        s_sub_u32 {s(sTO)}, {s(sTO)}, 1
        s_cbranch_scc1 L_fail
        s_getreg_b32 {s(sT1)}, hwreg(HW_REG_IB_STS, 0, 4)
        s_cmp_lg_u32 {s(sT1)}, 0
        s_cbranch_scc1 {lp}w
        s_waitcnt vmcnt(0)
        s_bitcmp1_b32 {s(sT0)}, 13
        s_cselect_b32 {s(sT1)}, -1, s0
        s_cselect_b32 s0, s0, -1
        s_min_u32 {s(m0)}, {s(m0)}, {s(sT1)}
        s_min_u32 {s(m1)}, {s(m1)}, s0
        s_add_u32 {s(sT0)}, {s(sT0)}, 0x1000
        s_or_b32 {s(sT0)}, {s(sT0)}, 0xc000
        s_cmp_lt_u32 {s(sT0)}, {s(sT2)}
        s_cbranch_scc1 {lp}
        s_cmp_gt_u32 {s(m0)}, {s(m1)}
        s_cselect_b32 {s(sT1)}, 65, 64
        s_mov_b64 exec, 1
        v_mov_b32 v2, {s(sT1)}
        buffer_atomic_add v2, off, {DBGS}, 0 offset:{self.D_VOTE} sc0
        v_add_u32 v2, {s(sT1)}, v2
        v_subrev_u32 v2, {32*64-1}, v2
        v_mov_b32 v3, {OOB:#x}
        v_cmp_lt_i32 vcc, 0, v2
        v_cndmask_b32 v3, v3, 0, vcc
        buffer_store_dword v2, v3, {DBGS}, 0 offen offset:{self.D_PAR} sc1
        s_mov_b64 exec, -1
        {end}:""")

    def warm_code(self, l0, l1, t):
        if not self.o.wcode:
            return
        here, lp = self.lab('pc'), self.lab('wc')
        self.k(f"""s_getpc_b64 vcc
        {here}:
        s_add_u32 vcc_lo, vcc_lo, {l0}-{here}
        s_addc_u32 vcc_hi, vcc_hi, 0
        v_lshlrev_b32 {v(t+2)}, 5, v0
        s_mov_b32 {s(sT0)}, 0
        {lp}:
        v_min_u32 {v(t)}, {l1}-{l0}-4, {v(t+2)}
        v_mov_b32 {v(t+1)}, 0
        v_lshl_add_u64 {v(t,2)}, {v(t,2)}, 0, vcc
        global_load_dword {v(t+3)}, {v(t,2)}, off
        v_add_u32 {v(t+2)}, 8192, {v(t+2)}
        s_add_u32 {s(sT0)}, {s(sT0)}, 8192
        s_cmp_lt_u32 {s(sT0)}, {l1}-{l0}
        s_cbranch_scc1 {lp}""")

    def put_flag(self, tmp, val, far=True):
        return [f"v_mov_b32 {v(tmp)}, {val}", "s_mov_b64 exec, 1"] + \
            ([f"buffer_store_dword {v(tmp)}, off, {WS}, {s(sFLAG)} sc1"] if far else []) + \
            [f"buffer_store_dword {v(tmp)}, off, {WS}, {s(sFLOC)}"] + self.trace(tmp, val) + ["s_mov_b64 exec, -1"]

    def tp(self, i, tmp=2):
        if self.o.stamps != 7:
            return
        self.k(f"s_memtime {s(32+2*i,2)}")
        if i == 7:
            self.k.many([f"s_sub_u32 s50, {s(sFLOC)}, {FLAGS}", "s_lshl_b32 s50, s50, 5", f"s_lshl_b32 s51, {s(sS)}, 5", "s_add_u32 s50, s50, s51",
                         f"s_add_u32 s50, s50, {DBG}"] + [f"v_writelane_b32 {v(tmp)}, {s(32+2*j)}, {j}" for j in range(8)] +
                        [f"s_mov_b32 {s(32+2*j)}, 0" for j in range(8)] +
                        ["v_mbcnt_lo_u32_b32 v0, -1, 0", "v_lshlrev_b32 v0, 2, v0", "s_mov_b64 exec, 0xff",
                         f"buffer_store_dword {v(tmp)}, v0, {WS}, s50 offen", "s_mov_b64 exec, -1"])

    def trace(self, tmp, val):
        if self.o.stamps != 6:
            return []
        return [f"v_mov_b32 {v(tmp)}, s32", f"s_and_b32 s35, s35, 0x3fc", f"s_sub_u32 s34, {s(sFLOC)}, {FLAGS}", "s_lshl_b32 s34, s34, 3",
                "s_add_u32 s34, s34, s35", f"s_add_u32 s34, s34, {DBG}", f"buffer_store_dword {v(tmp)}, off, {WS}, s34",
                "s_memrealtime s[32:33] ;@late", f"s_lshl_b32 s35, {val}, 2"]

    def adv(self, reg, stride, segreg_add=1):
        return [f"s_add_u32 {s(reg)}, {s(reg)}, {stride}",
                f"s_add_u32 {s(sT2)}, {s(sS)}, {segreg_add}", f"s_and_b32 {s(sT2)}, {s(sT2)}, {self.o.oxr-1}",
                f"s_cselect_b32 {s(sT2)}, 0, {stride*self.o.oxr}", f"s_sub_u32 {s(reg)}, {s(reg)}, {s(sT2)}"]

    def stamp(self, i):
        sel = [int(x) for x in self.o.sel.split(',')]
        if self.o.stamps in (1, 2) and i in sel:
            self.k(f"{'s_memrealtime' if self.o.stamps == 2 else 's_memtime'} {s(self.sST+2*sel.index(i), 2)}")

    def pstamp(self, i):
        if self.o.stamps == 4:
            if i in (10, 11):
                self.pstamp(i + 2)
            self.k(f"""{'s_memtime' if i in (12, 13) else 's_memrealtime'} vcc
            v_lshrrev_b32 v3, 6, v0
            v_lshlrev_b32 v3, 8, v3
            s_waitcnt lgkmcnt(0)
            v_mov_b32 v2, vcc_lo
            s_lshl_b32 vcc_lo, s2, 10
            s_add_u32 vcc_lo, vcc_lo, {DBG}
            s_mov_b64 exec, 1
            buffer_store_dword v2, v3, {WS}, vcc_lo offen offset:{4*i}
            s_mov_b64 exec, -1""")

    def stamps_out(self, n, tmp, half=False):
        if self.o.stamps in (0, 4, 6, 7):
            return
        k = self.k
        if self.o.stamps == 3:
            k(f"s_memtime {s(self.sST, 2)}\ns_memrealtime {s(self.sST+2, 2)}")
            n = 2
        skip = self.lab('nost')
        k(f"""s_lshr_b32 {s(sT3)}, {s(sS)}, {int(half)}
        s_and_b32 {s(sT0)}, {s(sT3)}, {self.o.severy-1}
        s_cbranch_scc1 {skip}
        s_waitcnt lgkmcnt(0)
        s_lshl_b32 {s(sT0)}, {s(sX)}, 5
        s_add_u32 {s(sT0)}, {s(sT0)}, {s(sT)}
        s_lshl_b32 {s(sT0)}, {s(sT0)}, 2
        s_add_u32 {s(sT0)}, {s(sT0)}, {s(sW)}
        s_lshl_b32 {s(sT0)}, {s(sT0)}, 6
        s_add_u32 {s(sT0)}, {s(sT0)}, {s(sT3)}
        s_lshl_b32 {s(sT0)}, {s(sT0)}, 6
        s_add_u32 {s(sT0)}, {s(sT0)}, {DBG}
        v_mov_b32 {v(tmp)}, 0""")
        for i in range(n):
            k(f"v_writelane_b32 {v(tmp)}, {s(self.sST+2*i)}, {i}")
        k(f"""v_mbcnt_lo_u32_b32 {v(tmp+1)}, -1, 0
        v_mbcnt_hi_u32_b32 {v(tmp+1)}, -1, {v(tmp+1)}
        v_lshlrev_b32 {v(tmp+1)}, 2, {v(tmp+1)}
        s_mov_b64 exec, 0xffff
        buffer_store_dword {v(tmp)}, {v(tmp+1)}, {WS}, {s(sT0)} offen
        s_mov_b64 exec, -1
        {skip}:""")

    def prologue(self):
        k = self.k
        k(f"""s_cmp_ge_u32 s2, 256
        s_cbranch_scc1 L_end
        s_load_dwordx16 s[32:47], s[0:1], 0
        s_load_dwordx8 s[48:55], s[0:1], 64
        s_load_dwordx2 s[56:57], s[0:1], 96
        s_getreg_b32 {s(sX)}, hwreg(HW_REG_XCC_ID)
        s_and_b32 {s(sX)}, {s(sX)}, 7
        v_lshrrev_b32 v1, 6, v0
        v_readfirstlane_b32 {s(sW)}, v1
        s_mov_b32 {s(sTO)}, 0x100000
        s_waitcnt lgkmcnt(0)""")
        srd(k, S_WS, P_WS, 256 * MB)
        srd(k, S_DBG, P_DBG, 256)
        srd(k, S_A, P_X, XSZ)
        self.pstamp(0)
        k(f"""s_cmp_lg_u32 {s(sW)}, 0
        s_cbranch_scc1 L_notick
        s_mov_b64 exec, 1
        v_mov_b32 v2, 1
        s_lshl_b32 {s(sT0)}, {s(sX)}, 5
        buffer_atomic_add v2, off, {DBGS}, {s(sT0)} sc0
        s_mov_b64 exec, -1
        L_notick:
        v_lshrrev_b32 v4, 5, v0
        s_lshl_b32 {s(sT0)}, s2, 3
        v_add_u32 v4, {s(sT0)}, v4
        v_mul_u32_u24 v4, 1280, v4
        v_and_b32 v5, 31, v0
        v_lshl_add_u32 v6, v5, 3, v4
        v_lshl_add_u32 v5, v5, 4, v4
        buffer_load_dwordx4 v[8:11], v5, {s(S_A,4)}, 0 offen
        buffer_load_dwordx4 v[12:15], v5, {s(S_A,4)}, 0 offen offset:512
        buffer_load_dwordx2 v[16:17], v6, {s(S_A,4)}, 0 offen offset:1024
        v_mov_b32 v44, -1
        v_mov_b32 v45, -1
        v_mov_b32 v46, -1
        v_mov_b32 v47, -1
        v_mov_b32 v48, 0
        v_lshlrev_b32 v7, 4, v0
        v_lshlrev_b32 v18, 2, v0
        s_lshr_b32 {s(sT0)}, s2, 5
        s_lshl_b32 {s(sT0)}, {s(sT0)}, 20
        s_bfe_u32 {s(sT1)}, s2, 0x10004
        s_lshl_b32 {s(sT1)}, {s(sT1)}, 18
        s_add_u32 {s(sT0)}, {s(sT0)}, {s(sT1)}
        s_and_b32 {s(sT1)}, s2, 15
        s_mul_i32 {s(sT1)}, {s(sT1)}, 11776
        s_add_u32 {s(sT0)}, {s(sT0)}, {s(sT1)}""")
        for i in range(3):
            k(f"buffer_store_dwordx4 v[44:47], v7, {WS}, {s(sT0)} offen sc1\ns_add_u32 {s(sT0)}, {s(sT0)}, 4096")
        k(f"""s_lshr_b32 {s(sT0)}, s2, 5
        s_lshl_b32 {s(sT0)}, {s(sT0)}, 18
        s_and_b32 {s(sT1)}, s2, 31
        s_lshl_b32 {s(sT1)}, {s(sT1)}, 12
        s_add_u32 {s(sT0)}, {s(sT0)}, {s(sT1)}
        s_add_u32 {s(sT0)}, {s(sT0)}, {X3R}
        buffer_store_dwordx4 v[44:47], v7, {WS}, {s(sT0)} offen sc1
        s_and_b32 {s(sT0)}, s2, 127
        s_lshl_b32 {s(sT0)}, {s(sT0)}, 10
        s_add_u32 {s(sT0)}, {s(sT0)}, {FLAGS}
        s_bfe_u32 {s(sT1)}, s2, 0x30004
        s_lshl_b32 {s(sT1)}, {s(sT1)}, 18
        s_and_b32 {s(sT2)}, s2, 15
        s_lshl_b32 {s(sT2)}, {s(sT2)}, 10
        s_add_u32 {s(sT1)}, {s(sT1)}, {s(sT2)}
        s_add_u32 {s(sT1)}, {s(sT1)}, {FFAR}
        s_cmp_lt_u32 s2, 128
        s_cselect_b32 {s(sT0)}, {s(sT0)}, {s(sT1)}
        buffer_store_dword v48, v18, {WS}, {s(sT0)} offen sc1
        v_bfe_u32 v49, v0, 5, 3
        s_and_b32 {s(sT0)}, s2, 3
        s_mul_i32 {s(sT0)}, {s(sT0)}, 10
        v_bfe_u32 v50, v0, 3, 2
        v_add_u32 v50, {s(sT0)}, v50
        v_add_u32 v51, 4, v50
        v_bfe_u32 v52, v0, 4, 1
        v_add3_u32 v52, v52, {s(sT0)}, 8
        {self.tile_kb(50, 53)}
        {self.tile_kb(51, 53)}
        {self.tile_kb(52, 53)}
        v_and_b32 v53, 7, v0
        v_xor_b32 v53, v53, v49
        v_lshlrev_b32 v53, 4, v53
        v_lshl_add_u32 v53, v49, 7, v53
        v_add_u32 v50, v50, v53
        v_add_u32 v51, v51, v53
        v_bfe_u32 v53, v0, 1, 3
        v_xor_b32 v53, v53, v49
        v_lshlrev_b32 v53, 4, v53
        v_lshl_add_u32 v53, v49, 7, v53
        v_and_b32 v54, 1, v0
        v_lshl_add_u32 v53, v54, 3, v53
        v_add_u32 v52, v52, v53""")
        k(f"""s_cmp_lg_u32 {s(sW)}, 0
        s_cbranch_scc1 L_notick2
        v_mov_b32 v3, 0
        s_mov_b64 exec, 1
        ds_write_b32 v3, v2
        s_mov_b64 exec, -1
        L_notick2:""")
        self.barrier()
        k(f"""v_mov_b32 v3, 0
        ds_read_b32 v2, v3
        v_readfirstlane_b32 {s(sT)}, v2""")
        self.barrier()
        self.pstamp(1)
        if self.o.stamps == 4:
            k(f"s_lshl_b32 {s(sT0)}, {s(sX)}, 5\ns_add_u32 {s(sT0)}, {s(sT0)}, {s(sT)}\nv_mov_b32 v2, {s(sT0)}\ns_mov_b64 exec, 1\n"
              f"buffer_store_dword v2, v3, {WS}, vcc_lo offen offset:60\ns_mov_b64 exec, -1")
        self.layernorm(8, 20, 40)
        k(f"""s_lshr_b32 {s(sT0)}, s2, 2
        s_lshl_b32 {s(sT0)}, {s(sT0)}, 17
        s_add_u32 {s(sT0)}, {s(sT0)}, {HA}
        buffer_store_dwordx4 v[8:11], v50, {WS}, {s(sT0)} offen sc1
        buffer_store_dwordx4 v[12:15], v51, {WS}, {s(sT0)} offen sc1
        buffer_store_dwordx2 v[16:17], v52, {WS}, {s(sT0)} offen sc1
        s_lshr_b32 {s(sL)}, {s(sX)}, 2
        s_and_b32 {s(sHG)}, {s(sX)}, 3
        s_lshl_b32 {s(sFLAG)}, {s(sX)}, 5
        s_add_u32 {s(sFLAG)}, {s(sFLAG)}, {s(sT)}
        s_lshl_b32 {s(sFLAG)}, {s(sFLAG)}, 2
        s_add_u32 {s(sFLAG)}, {s(sFLAG)}, {s(sW)}
        s_lshl_b32 {s(sFLAG)}, {s(sFLAG)}, 7
        s_add_u32 {s(sFLOC)}, {s(sFLAG)}, {FLAGS}
        s_mov_b32 {s(sS)}, 0""")
        self.warm()
        k(f"""s_cmp_lt_u32 {s(sT)}, 24
        s_cbranch_scc1 L_roleC
        s_cmp_lt_u32 {s(sT)}, 28
        s_cbranch_scc1 L_roleT
        s_cmp_lt_u32 {s(sT)}, 30
        s_cbranch_scc1 L_roleB
        s_cmp_lt_u32 {s(sT)}, 32
        s_cbranch_scc1 L_roleR
        s_mov_b32 {s(sT3)}, 2
        L_fail:
        s_mov_b64 exec, 1
        s_lshl_b32 {s(sT3)}, {s(sT3)}, 8
        s_add_u32 {s(sT3)}, {s(sT3)}, {s(sT)}
        s_lshl_b32 {s(sT3)}, {s(sT3)}, 8
        s_add_u32 {s(sT3)}, {s(sT3)}, {s(sX)}
        s_lshl_b32 {s(sT3)}, {s(sT3)}, 8
        s_add_u32 {s(sT3)}, {s(sT3)}, {s(sS)}
        v_mov_b32 v2, {s(sT3)}
        buffer_store_dword v2, off, {DBGS}, 0 offset:{self.D_FAIL}
        L_end:
        s_endpgm""")

    def role_gate(self, r):
        k = self.k
        def leave():
            self.arrive0(0)
            if r == 'C':
                self.loaded()
        if r not in self.o.roles:
            leave()
            k("s_endpgm")
            return False
        if self.o.layers == 1:
            go = self.lab('go')
            k(f"s_cmp_eq_u32 {s(sL)}, 0\ns_cbranch_scc1 {go}")
            leave()
            k(f"s_endpgm\n{go}:")
        return True

    def role_C(self):
        k = self.k
        o = self.o
        k("L_roleC:")
        self.pstamp(2)
        if not self.role_gate('C'):
            return
        MEM, QK, PX, WR, XQ, XT = 0, 12288, 14336, 18432, 22528, 32768
        V = Alloc(2, 256)
        S = Alloc(S_FREE, 102)
        vL = 1
        T2 = V(2, 2)
        WOV = V(80, 4)
        MF, FB, XA = V(40, 4), V(24, 4), V(24, 4)
        VA, VB, ONES, PM, MASK = (V(4, 4) for _ in range(5))
        SENT, self.vTagM = V(), V()
        vIDX = PM + 3
        A = V(26, 2)
        SUMM, vFa, SUMX, vMH = V(5, 2), V(), V(5, 2), V()
        (vXr0, vXr1, vT16, vT8, vL16, vL4, vL16x, vL4x, vL8, vQKw, vQKr, vXQw, vQXr, vPw8, vPw2, vO2, vO2l,
         vWRw, vAG, vX3, vFl) = (V() for _ in range(21))
        vOX = vXQw
        sC, sNEG, sSLOT, sXM0, sH, sOXB, cOWN, cP1, cP2, sOWN, sP1, sP2, sA0, sA1, sA2, sX2a, sX2b, sLIM, sX3, cX2, sPEND, sHb, sHn, sNM, sHD = (S() for _ in range(25))
        sR1, sHF, sG2 = S(2, 2), S(2, 2), S(2, 2)
        sTAG, sS2 = sR1 + 1, sNEG
        sMSK = 12
        self.sST = 32

        def WQ(ks, c=4): return a(4 * ks, c)
        def WK(ks, c=4): return a(80 + 4 * ks, c)
        def WV(ks, c=4): return a(160 + 4 * ks, c)
        def WO(n, c=8, off=0): return a(240 + 8 * n + off, c) if n < 2 else v(WOV + 8 * (n - 2) + off, c)

        srd(k, S_A, P_WQ, 640 * 12288)
        srd(k, S_B, P_WK, 640 * 12288)
        srd(k, S_C, P_WV, 640 * 12288)
        srd(k, S_D, P_WO, 6144 * 1280)
        srd(k, S_E, P_MEM0, 10240)
        t0, t1, t2, t3, t4, t5 = range(A, A + 6)
        k(f"""v_and_b32 {v(vL)}, 63, v0
        s_mul_i32 {s(sT0)}, {s(sHG)}, 3072
        s_lshl_b32 {s(sT1)}, {s(sT)}, 7
        s_add_u32 {s(sT0)}, {s(sT0)}, {s(sT1)}
        s_mul_i32 {s(sT1)}, {s(sW)}, {8*12288}
        s_add_u32 {s(sT0)}, {s(sT0)}, {s(sT1)}
        v_lshrrev_b32 {v(t0)}, 3, {v(vL)}
        v_mul_u32_u24 {v(t0)}, 12288, {v(t0)}
        v_and_b32 {v(t1)}, 7, {v(vL)}
        v_lshl_add_u32 {v(t0)}, {v(t1)}, 4, {v(t0)}
        v_add_u32 {v(t0)}, {s(sT0)}, {v(t0)}
        s_lshl_b32 {s(sA0)}, {s(sW)}, 10""")

        k(f"""s_lshl_b32 {s(sT0)}, {s(sHG)}, 2
        s_add_u32 {s(sT0)}, {s(sT0)}, {s(sW)}
        s_mul_i32 {s(sT0)}, {s(sT0)}, {384*1280}
        s_lshl_b32 {s(sT1)}, {s(sT)}, 6
        s_add_u32 {s(sT0)}, {s(sT0)}, {s(sT1)}
        s_cmp_lt_u32 {s(sT)}, 20
        s_cselect_b32 {s(sT0)}, {s(sT0)}, {OOB:#x}
        v_lshrrev_b32 {v(t3)}, 2, {v(vL)}
        v_mul_u32_u24 {v(t3)}, 1280, {v(t3)}
        v_and_b32 {v(t4)}, 3, {v(vL)}
        v_lshl_add_u32 {v(t3)}, {v(t4)}, 4, {v(t3)}
        v_add_u32 {v(t3)}, {s(sT0)}, {v(t3)}
        s_lshl_b32 {s(sA1)}, {s(sW)}, 12""")
        NSL = 10

        def stage(c):
            for i in range(4):
                if c >= 6:
                    k(f"""s_add_u32 m0, {s(sA0)}, {(c%NSL)*16384+4096*i}
                    s_mov_b32 {s(sT1)}, {(((c-6)%5)*128+32*i)*12288}
                    buffer_load_dwordx4 {v(t0)}, {s((S_A,S_B,S_C)[(c-6)//5],4)}, {s(sT1)} offen {NT}lds""")
                else:
                    k(f"""s_add_u32 m0, {s(sA1)}, {(c%NSL)*16384+1024*i}
                    s_mov_b32 {s(sT1)}, {(c*64+16*i)*1280}
                    buffer_load_dwordx4 {v(t3)}, {s(S_D,4)}, {s(sT1)} offen lds""")
        for c in range(o.carr):
            stage(c)
        j_, hf, g_, t_, u0, u1, u2 = range(MF, MF + 7)
        k(f"""v_and_b32 {v(j_)}, 7, {v(vL)}
        v_bfe_u32 {v(hf)}, {v(vL)}, 3, 1
        v_lshrrev_b32 {v(g_)}, 4, {v(vL)}
        v_and_b32 {v(t_)}, 15, {v(vL)}
        v_lshlrev_b32 {v(vT16)}, 4, v0
        v_lshlrev_b32 {v(vT8)}, 3, v0
        v_add_u32 {v(vT8)}, 8192, {v(vT8)}
        v_lshlrev_b32 {v(vL16)}, 4, {v(vL)}
        v_lshlrev_b32 {v(vL8)}, 3, {v(vL)}
        v_lshlrev_b32 {v(vL4)}, 2, {v(vL)}
        s_add_u32 {s(sT0)}, {s(sW)}, 1
        s_mul_i32 {s(sT0)}, {s(sT0)}, 1280
        v_add_u32 {v(vL16x)}, {s(sT0)}, {v(vL16)}
        v_add_u32 {v(vL4x)}, {s(sT0)}, {v(vL4)}
        v_cmp_eq_u32 {s(sHF,2)}, 1, {v(hf)}
        v_cmp_lt_u32 {s(sG2,2)}, 1, {v(g_)}
        v_mov_b32 {v(u0)}, 0x4444
        v_mov_b32 {v(u1)}, 0xeeee
        v_cndmask_b32 {v(vIDX)}, {v(u0)}, {v(u1)}, {s(sHF,2)}
        v_mov_b32 {v(u0)}, 0xffff
        v_mov_b32 {v(u1)}, 0xffff0000
        v_cndmask_b32 {v(vMH)}, {v(u0)}, {v(u1)}, {s(sHF,2)}
        v_mul_u32_u24 {v(vXr0)}, 10240, {v(hf)}
        v_lshl_add_u32 {v(vXr0)}, {v(j_)}, 7, {v(vXr0)}
        v_xor_b32 {v(u0)}, {v(g_)}, {v(j_)}
        v_lshl_add_u32 {v(vXr0)}, {v(u0)}, 4, {v(vXr0)}
        v_add_u32 {v(vXr0)}, {XT}, {v(vXr0)}
        v_xor_b32 {v(vXr1)}, 64, {v(vXr0)}
        v_lshrrev_b32 {v(u0)}, 5, {v(vL)}
        v_and_b32 {v(u1)}, 1, {v(g_)}
        v_lshlrev_b32 {v(u2)}, 4, {v(t_)}
        v_lshl_add_u32 {v(u2)}, {v(u1)}, 3, {v(u2)}
        v_lshl_add_u32 {v(vQKw)}, {v(u0)}, 10, {v(u2)}
        s_lshl_b32 {s(sT0)}, {s(sW)}, 8
        v_add_u32 {v(vQKw)}, {s(sT0)}, {v(vQKw)}
        v_lshl_add_u32 {v(vXQw)}, {v(u0)}, 8, {v(u2)}
        s_lshl_b32 {s(sT0)}, {s(sW)}, 9
        v_add_u32 {v(vXQw)}, {s(sT0)}, {v(vXQw)}
        v_lshlrev_b32 {v(vWRw)}, 9, {v(u1)}
        v_lshl_add_u32 {v(vWRw)}, {v(u0)}, 6, {v(vWRw)}
        v_bfe_u32 {v(u2)}, {v(vL)}, 1, 1
        v_lshl_add_u32 {v(vWRw)}, {v(u2)}, 5, {v(vWRw)}
        v_bfe_u32 {v(u2)}, {v(vL)}, 2, 2
        v_lshl_add_u32 {v(vWRw)}, {v(u2)}, 3, {v(vWRw)}
        v_and_b32 {v(u1)}, 1, {v(vL)}
        v_lshl_add_u32 {v(vWRw)}, {v(u1)}, 2, {v(vWRw)}
        s_lshl_b32 {s(sT0)}, {s(sW)}, 10
        s_add_u32 {s(sT0)}, {s(sT0)}, {WR}
        v_add_u32 {v(vWRw)}, {s(sT0)}, {v(vWRw)}
        v_lshl_add_u32 {v(vQKr)}, {v(g_)}, 3, {v(u2)}
        v_lshlrev_b32 {v(vQKr)}, 4, {v(vQKr)}
        v_lshl_add_u32 {v(vQKr)}, {v(u1)}, 3, {v(vQKr)}
        v_bfe_u32 {v(u0)}, {v(vL)}, 1, 2
        v_lshlrev_b32 {v(vAG)}, 7, {v(u0)}
        v_lshrrev_b32 {v(u0)}, 3, {v(vL)}
        v_lshl_add_u32 {v(vAG)}, {v(u0)}, 4, {v(vAG)}
        v_lshl_add_u32 {v(vAG)}, {v(u1)}, 3, {v(vAG)}
        s_lshl_b32 {s(sT0)}, {s(sT)}, 9
        s_add_u32 {s(sT0)}, {s(sT0)}, {R_AG}
        v_add_u32 {v(vAG)}, {s(sT0)}, {v(vAG)}
        s_lshl_b32 {s(sT2)}, {s(sT)}, 10
        s_and_b32 {s(sT0)}, {s(sT2)}, 0x6000
        s_add_u32 {s(sT0)}, {s(sT0)}, {s(sT2)}
        s_lshl_b32 {s(sT1)}, {s(sL)}, 20
        s_add_u32 {s(sT0)}, {s(sT0)}, {s(sT1)}
        s_add_u32 {s(sT0)}, {s(sT0)}, {X3R}
        v_add_u32 {v(vX3)}, {s(sT0)}, {v(vL16)}
        s_and_b32 {s(sT0)}, {s(sW)}, 1
        s_lshl_b32 {s(sT0)}, {s(sT0)}, 3
        s_lshr_b32 {s(sT1)}, {s(sW)}, 1
        v_lshl_add_u32 {v(u1)}, {v(g_)}, 4, {v(j_)}
        v_add_u32 {v(u1)}, {s(sT0)}, {v(u1)}
        s_lshl_b32 {s(sT0)}, {s(sT1)}, 11
        v_lshl_add_u32 {v(vQXr)}, {v(u1)}, 4, {s(sT0)}
        s_mul_i32 {s(sT0)}, {s(sT1)}, 1536
        v_lshlrev_b32 {v(vPw2)}, 4, {v(u1)}
        v_lshlrev_b32 {v(vPw8)}, 3, {v(u1)}
        v_add_u32 {v(vPw8)}, 1024, {v(vPw8)}
        v_cndmask_b32 {v(vPw8)}, {v(vPw2)}, {v(vPw8)}, {s(sHF,2)}
        v_add_u32 {v(vPw8)}, {s(sT0)}, {v(vPw8)}
        v_lshl_add_u32 {v(vPw2)}, {v(hf)}, 1, {v(vPw2)}
        v_add_u32 {v(vPw2)}, {s(sT0)}, {v(vPw2)}
        s_lshl_b32 {s(sT0)}, {s(sW)}, 8
        s_add_u32 {s(sT0)}, {s(sT0)}, {s(sT2)}
        s_add_u32 {s(sT0)}, {s(sT0)}, {R_X2}
        v_lshlrev_b32 {v(u0)}, 5, {v(j_)}
        v_lshl_add_u32 {v(vO2)}, {v(g_)}, 3, {v(u0)}
        v_add_u32 {v(vO2)}, {s(sT0)}, {v(vO2)}
        v_mov_b32 {v(u1)}, {OOB:#x}
        v_cndmask_b32 {v(vO2)}, {v(vO2)}, {v(u1)}, {s(sHF,2)}
        v_lshl_add_u32 {v(vO2l)}, {v(g_)}, 8, {v(u0)}
        v_lshl_add_u32 {v(vO2l)}, {v(hf)}, 4, {v(vO2l)}
        s_mul_i32 {s(sT0)}, {s(sW)}, 6144
        s_add_u32 {s(sT0)}, {s(sT0)}, {R_X2}
        v_add_u32 {v(vO2l)}, {s(sT0)}, {v(vO2l)}
        ; workgroups without Wo duty use these loads to pull a later x tile into this die's L2
        s_lshl_b32 {s(sT0)}, {s(sT)}, 2
        s_add_u32 {s(sT0)}, {s(sT0)}, {s(sW)}
        s_sub_u32 {s(sT0)}, {s(sT0)}, 80
        s_lshl_b32 {s(sT2)}, {s(sT0)}, 12
        s_and_b32 {s(sT1)}, {s(sT2)}, 0xe000
        s_add_u32 {s(sT2)}, {s(sT2)}, {s(sT1)}
        s_cmp_lt_u32 {s(sT0)}, 10
        s_cselect_b32 {s(sT0)}, {s(sT2)}, {OOB:#x}
        v_add_u32 {v(u1)}, {s(sT0)}, {v(vL16)}
        s_cmp_lt_u32 {s(sT)}, 20
        s_cselect_b64 vcc, -1, 0
        v_cndmask_b32 {v(vO2l)}, {v(u1)}, {v(vO2l)}, vcc
        s_lshl_b32 {s(sOXB)}, {s(sT)}, 12
        s_mul_i32 {s(sT2)}, {s(sHG)}, {2*49152}
        s_add_u32 {s(sOXB)}, {s(sOXB)}, {s(sT2)}
        s_mul_i32 {s(sT2)}, {s(sL)}, {OXL}
        s_add_u32 {s(sOXB)}, {s(sOXB)}, {s(sT2)}
        s_add_u32 {s(sOXB)}, {s(sOXB)}, {OX}
        v_lshlrev_b32 {v(u0)}, 2, {v(g_)}
        v_lshl_add_u32 {v(u0)}, {v(hf)}, 4, {v(u0)}
        s_lshl_b32 {s(sT2)}, {s(sW)}, 3
        v_add_u32 {v(u1)}, {s(sT2)}, {v(j_)}""")
        scale = 192 ** -0.5
        k(f"v_mov_b32 {v(u2)}, {f2u(-1e9/scale/3)}")
        for r in range(4):
            k(f"v_cmp_gt_u32 vcc, {v(u0)}, {v(u1)}\nv_cndmask_b32 {v(MASK+r)}, 0, {v(u2)}, vcc\nv_add_u32 {v(u0)}, 1, {v(u0)}")
        for r in range(4):
            k(f"v_mov_b32 {v(ONES+r)}, {'0x3f803f80' if r < 3 else 0}")
        k(f"""v_mov_b32 {v(VA+3)}, 0
        v_mov_b32 {v(VB+3)}, 0
        s_mov_b32 {s(sC)}, {f2u(scale*math.log2(math.e))}
        s_cmp_lt_u32 {s(sT)}, 20
        s_cselect_b32 {s(cX2)}, 4096, 0
        s_lshl_b32 {s(sXM0)}, {s(sW)}, 10
        s_add_u32 {s(sXM0)}, {s(sXM0)}, {XT}
        s_lshl_b32 {s(sHb)}, {0 if o.nowait else s(sL)}, 23
        s_add_u32 {s(sHb)}, {s(sHb)}, {HA}
        s_mov_b32 {s(sH)}, {s(sHb)}
        s_mul_i32 {s(sT0)}, {s(sT)}, 43
        s_lshr_b32 {s(sT0)}, {s(sT0)}, 7
        s_mul_i32 {s(sT0)}, {s(sT0)}, 3
        s_add_u32 {s(sT1)}, {s(sT0)}, 3
        s_add_u32 {s(cP1)}, {s(sT)}, 1
        s_cmp_eq_u32 {s(cP1)}, {s(sT1)}
        s_cselect_b32 {s(cP1)}, {s(sT0)}, {s(cP1)}
        s_add_u32 {s(cP2)}, {s(cP1)}, 1
        s_cmp_eq_u32 {s(cP2)}, {s(sT1)}
        s_cselect_b32 {s(cP2)}, {s(sT0)}, {s(cP2)}
        s_mul_i32 {s(cOWN)}, {s(sT)}, 6400
        s_mul_i32 {s(cP1)}, {s(cP1)}, 6400
        s_mul_i32 {s(cP2)}, {s(cP2)}, 6400""")

        def st5(d, so, x):
            return [f"buffer_store_dwordx4 {v(d,4)}, {v(vL16x if x else vL16)}, {WS}, {s(so)} offen",
                    f"buffer_store_dword {v(d+4)}, {v(vL4x if x else vL4)}, {WS}, {s(so)} offen offset:1024"]

        def ld5(d, d1, so, x):
            return [f"buffer_load_dwordx4 {v(d,4)}, {v(vL16x if x else vL16)}, {WS}, {s(so)} offen sc1",
                    f"buffer_load_dword {v(d1)}, {v(vL4x if x else vL4)}, {WS}, {s(so)} offen offset:1024 sc1"]

        def x3_adr(dst, slot):
            return [f"s_lshr_b32 {s(dst)}, {s(slot)}, 2", f"s_and_b32 {s(dst)}, {s(dst)}, 0xf0000"]

        flat = lambda L: [x for g in L for x in (g if isinstance(g, (list, tuple)) else [g]) if isinstance(x, str)]

        def x_dma():
            return [[f"s_add_u32 m0, {s(sXM0)}, {4096*i}", f"s_add_u32 {s(sHD)}, {s(sH)}, {(i>>1)*16384+(i&1)*4096}",
                     f"buffer_load_dwordx4 {v(vT16)}, {WS}, {s(sHD)} offen sc1 lds"] for i in range(10)]
        cB = 24

        def x_dma3(w3):
            out = []
            for j in range(0 if w3 else 3):
                out += [[f"s_add_u32 m0, {s(sXM3)}, {12288*j}", f"s_add_u32 {s(sHD)}, {s(sH)}, {s(cB+j)}"][:2 if i == 0 else 0] +
                        [f"buffer_load_dwordx4 {v(vL16)}, {WS}, {s(sHD)} offen offset:{1024*i} sc1 lds"] for i in range(4)]
            return out + x_dma()[9:]
        x_adv = [f"s_mov_b32 {s(sH)}, {s(sHn)}", f"s_xor_b32 {s(sXM0)}, {s(sXM0)}, 65536", f"s_add_u32 {s(sHb)}, {s(sHb)}, {HSEG}"] + \
            self.near(sHn, sHb, sPAR, s(sNM))
        self.pstamp(3)
        self.arrive0(4 * o.carr, 1)
        for c in range(o.carr, NSL - 1):
            stage(c)
        k(f"""v_bfe_u32 {v(t2)}, {v(vL)}, 2, 2
        v_lshl_add_u32 {v(t1)}, {v(g_)}, 3, {v(t2)}
        v_lshlrev_b32 {v(t1)}, 7, {v(t1)}
        v_lshl_add_u32 {v(t1)}, {v(t4)}, 3, {v(t1)}
        s_lshl_b32 {s(sT0)}, {s(sW)}, 5
        v_add_u32 {v(t1)}, {s(sT0)}, {v(t1)}
        v_lshrrev_b32 {v(t5)}, 5, {v(vL)}
        v_lshlrev_b32 {v(t5)}, 4, {v(t5)}
        v_lshl_add_u32 {v(t5)}, {v(hf)}, 3, {v(t5)}
        v_and_b32 {v(u0)}, 1, {v(g_)}
        v_lshl_add_u32 {v(t5)}, {v(u0)}, 2, {v(t5)}
        v_bfe_u32 {v(u0)}, {v(vL)}, 2, 1
        v_add_u32 {v(t5)}, {v(t5)}, {v(u0)}
        v_lshlrev_b32 {v(t5)}, 6, {v(t5)}
        v_lshl_add_u32 {v(t5)}, {v(t4)}, 3, {v(t5)}
        v_add_u32 {v(t5)}, {s(sA1)}, {v(t5)}""")
        go_ld = f"buffer_load_dwordx3 {v(A+22,3)}, off, {DBGS}, 0 offset:{self.D_GO} sc1"
        for c in range(21):
            if c == 15:
                chk, rty = self.lab('gchk'), self.lab('grty')
                k(f"{chk}:\nv_min_u32 {v(A+20)}, {v(A+22)}, {v(A+24)}\nv_cmp_eq_u32 vcc, 0, {v(A+20)}\ns_cbranch_vccnz {rty}")
                self.ool.append([rty + ':', 's_sleep 8', go_ld] + self.timeout(1) + ['s_waitcnt vmcnt(0)', f's_branch {chk}'])
            k(f"s_waitcnt vmcnt({4*min(NSL-2, 20-c) + (22 if c > 15 else 0)})")
            self.barrier()
            if c == 15:
                l0, l1 = self.lab('t0'), self.lab('t0')
                k(f"""v_mul_u32_u24 {v(A+6)}, 1280, {v(j_)}
                v_lshrrev_b32 {v(A+7)}, 4, v0
                v_lshl_add_u32 {v(A+6)}, {v(A+7)}, 5, {v(A+6)}
                v_lshl_add_u32 {v(A+6)}, {v(hf)}, 2, {v(A+6)}""")
                for i in range(3):
                    for p in range(4):
                        k(f"buffer_load_dword {v(A+8+4*i+p)}, {v(A+6)}, {s(S_E,4)}, 0 offen offset:{512*i+8*p}")
                k(f"s_cmp_eq_u32 {s(sL)}, 0\ns_cbranch_scc1 {l0}\ns_waitcnt vmcnt(0)\ns_branch {l1}\n{l0}:")
                k.many(flat(x_dma()))
                k(l1 + ':')
            if c + NSL - 1 < 21:
                stage(c + NSL - 1)
            if c == o.carr:
                self.arrive0(0, 2)
                self.pstamp(4)
            if c == o.gpos:
                k(go_ld)
            k(f"v_add_u32 {v(t2)}, {(c%NSL)*16384}, {v(t1 if c >= 6 else t5)}")
            if c >= 6:
                for i in range(4):
                    for h in range(2):
                        k(f"ds_read_b64_tr_b16 {a(16*(c-6)+4*i+2*h,2)}, {v(t2)} offset:{i*4096+h*512}")
            else:
                for t in range(2):
                    for f in range(2):
                        for h in range(2):
                            k(f"ds_read_b64_tr_b16 {WO(2*c+t,2,4*f+2*h)}, {v(t2)} offset:{f*2048+h*128+t*32}")
            if c in (9, 14):
                self.pstamp(5 if c == 9 else 6)
        self.pstamp(7)
        self.barrier()

        PD = 5

        def xread(hs):
            ks, mt = hs >> 1, hs & 1
            return f"ds_read_b128 {v(FB+4*(hs%6),4)}, {v(vXr1 if ks & 1 else vXr0)} offset:{mt*20480+(ks>>1)*1024}"
        xpos = [0]

        def xm(n):
            out = []
            for i in range(n):
                hs, m = divmod(xpos[0], 3)
                xpos[0] += 1
                ks, mt = hs >> 1, hs & 1
                f = v(FB + 4 * (hs % 6), 4)
                x, y = ((WQ(ks), f), (WK(ks), f), (f, WV(ks)))[m]
                acc = v(XA + 8 * m + 4 * mt, 4)
                out.append((f"v_mfma_f32_16x16x32_bf16 {acc}, {x}, {y}, {acc if ks else 0}",
                            f"need {v(FB+4*((hs+1)%6),4)}" if m == 2 and i + 1 < n else None,
                            xread(hs + PD) if m == 0 and hs + PD < 40 else None))
            return out

        def xs(n, *queues):
            pack(k, xm(n), queues)

        def spaced(groups, n=3):
            return [x for g in groups for x in list(g) + [n]]

        AQ, AK, AV = A, A + 4, A + 8
        zero_acc = [f"v_mov_b64 {v(A+2*i,2)}, 0" for i in range(6)]

        def x_finish():
            assert xpos[0] == 120
            out = [f"v_xor_b32 {v(vXr0)}, 0x10000, {v(vXr0)}", f"v_xor_b32 {v(vXr1)}, 0x10000, {v(vXr1)}"]
            for m in range(3):
                for mt in range(2):
                    acc = XA + 8 * m + 4 * mt
                    d = acc if m < 2 else (VA, VB)[mt]
                    out += [f"v_cvt_pk_bf16_f32 {v(d)}, {v(acc)}, {v(acc+1)}", f"v_cvt_pk_bf16_f32 {v(d+1)}, {v(acc+2)}, {v(acc+3)}"]
                    if m < 2:
                        out.append(f"ds_write_b64 {v(vXQw)}, {v(d,2)} offset:{XQ+4096*m+2048*mt}")
            return out

        def tag(r):
            return f"v_bfi_b32 {v(r)}, 1, {s(sTAG)}, {v(r)}"

        def select5(dst, s0, s1, sm, tagged):
            x = [f"v_cndmask_b32 {v(dst+r)}, {v(s0+r)}, {v(s1+r)}, {s(sHF,2)}" for r in range(4)]
            return [f"v_cndmask_b32 {v(sm)}, {v(sm)}, {v(sm+1)}, {s(sHF,2)}",
                    f"v_cndmask_b32 {v(sm+2)}, {v(sm+2)}, {v(sm+3)}, {s(sHF,2)}",
                    f"v_cndmask_b32 {v(dst+4)}, {v(sm)}, {v(sm+2)}, {s(sG2,2)}"] + \
                ([tag(dst + 4)] + x + [tag(dst)] if tagged else x)

        def add4(d, x, y, pk):
            if pk:
                return [f"v_pk_add_f32 {v(d+r,2)}, {v(x+r,2)}, {v(y+r,2)}" for r in (0, 2)]
            return [f"v_add_f32 {v(d+r)}, {v(x+r)}, {v(y+r)}" for r in range(4)]

        def add5(x, ld, pk):
            return add4(ld, ld, ld + 4, pk) + [f"v_add_f32 {v(ld+8)}, {v(ld+8)}, {v(ld+9)}"] + add4(x, x, ld, pk) + \
                [f"v_add_f32 {v(x+4)}, {v(x+4)}, {v(ld+8)}"]

        def softmax5(x, t, fill=()):
            fill = list(fill) + [[]] * 3
            out = []
            out += [f"v_max3_f32 {v(t)}, {v(x)}, {v(x+1)}, {v(x+2)}", f"v_max3_f32 {v(t)}, {v(t)}, {v(x+3)}, {v(x+4)}"] + fill[0] + \
                [f"v_max_f32_dpp {v(t)}, {v(t)}, {v(t)} row_ror:8 row_mask:0xf bank_mask:0xf", f"v_mov_b32 {v(t+1)}, {v(t)}"] + fill[1] + \
                [f"v_permlane16_swap_b32 {v(t)}, {v(t+1)}", f"v_max_f32 {v(t)}, {v(t)}, {v(t+1)}", f"v_mov_b32 {v(t+1)}, {v(t)}"] + fill[2] + \
                [f"v_permlane32_swap_b32 {v(t)}, {v(t+1)}", f"v_max_f32 {v(t)}, {v(t)}, {v(t+1)}", f"v_mul_f32 {v(t)}, {s(sC)}, {v(t)}"]
            out += [f"v_fma_f32 {v(x+r)}, {v(x+r)}, {s(sC)}, -{v(t)}" for r in (4, 0, 1, 2, 3)]
            out += [f"v_exp_f32 {v(x+r)}, {v(x+r)}" for r in (4, 0, 1, 2, 3)]
            return out

        FLV = T2
        fl_ld = f"buffer_load_dword {v(FLV)}, {v(vFl)}, {WS}, 0 offen sc1"

        def wait_h(want_add):
            chk, rty = self.lab('fchk'), self.lab('frty')
            self.ool.append([rty + ':', f's_sleep {o.fsleep}', fl_ld] + self.timeout(10) + ['s_waitcnt vmcnt(0)', f's_branch {chk}'])
            return [f"v_lshl_add_u32 {v(FLV+1)}, {s(sS)}, 1, {v(vFa)}"] + \
                ([f"v_add_u32 {v(FLV+1)}, {2*want_add-8}, {v(FLV+1)}"] if want_add != 4 else []) + \
                   [f"v_min_i32 {v(FLV+1)}, 128, {v(FLV+1)}",
                    [chk + ':', f"v_cmp_gt_i32 vcc, {v(FLV+1)}, {v(FLV)}", f"s_cbranch_vccnz {rty}"]]

        self.take_par(A + 24)
        k(f"""s_lshl_b32 {s(sNM)}, {0 if o.nowait else s(sL)}, 13
        s_xor_b32 {s(sT0)}, {s(sPAR)}, 0x2000
        v_add_u32 {v(vX3)}, {s(sT0)}, {v(vX3)}""")
        k.many(self.near(sH, sHb, sPAR, s(sNM)) + x_adv[2:])
        self.flag_lines(vFl, u0, False, 31, 3)
        k(f"""v_lshrrev_b32 {v(u0)}, 2, {v(vL)}
        v_and_b32 {v(u0)}, 12, {v(u0)}
        v_and_b32 {v(u1)}, 3, {v(vL)}
        v_add_u32 {v(u0)}, {v(u0)}, {v(u1)}
        s_lshl_b32 {s(sT0)}, {s(sX)}, 14
        s_add_u32 {s(sT0)}, {s(sT0)}, {FLAGS+24*512}
        v_lshl_add_u32 {v(u0)}, {v(u0)}, 7, {s(sT0)}
        v_bfe_u32 {v(u1)}, {v(vL)}, 2, 1
        v_and_b32 {v(u1)}, {0 if o.nowait else s(sL)}, {v(u1)}
        v_cmp_eq_u32 vcc, 1, {v(u1)}
        v_cndmask_b32 {v(vFl)}, {v(u0)}, {v(vFl)}, vcc
        v_mov_b32 {v(u0)}, {4-2*o.oxr if 'T' in o.roles else -500}
        v_cndmask_b32 {v(vFa)}, {v(u0)}, 8, vcc""")
        k(f"""v_mov_b32 {v(A)}, {OOB:#x}
        s_cmp_lt_u32 {s(sT)}, 20
        s_cselect_b32 {s(sLIM)}, {-1 if o.free else -2}, -1
        s_cselect_b64 vcc, -1, 0
        v_mov_b32 {v(SENT)}, -1
        v_cndmask_b32 {v(self.vTagM)}, 0, 1, vcc
        v_cndmask_b32 {v(vAG)}, {v(A)}, {v(vAG)}, vcc
        v_cndmask_b32 {v(vX3)}, {v(A)}, {v(vX3)}, vcc
        s_cmp_eq_u32 {s(sW)}, 2
        s_cselect_b64 vcc, -1, 0
        v_cndmask_b32 {v(vFl)}, {v(A)}, {v(vFl)}, vcc
        v_cmp_ne_u32 {s(sR1,2)}, 0, {v(vL)}
        v_cndmask_b32 {v(vL)}, 0, {v(A)}, {s(sR1,2)}
        v_mov_b32 {v(A)}, {-1000}
        v_cndmask_b32 {v(vFa)}, {v(A)}, {v(vFa)}, vcc""")
        vLane0 = vL
        k(f"""v_mov_b64 {v(A,2)}, 0
        v_mov_b64 {v(A+2,2)}, 0
        ds_write_b128 {v(vT16)}, {v(A,4)} offset:{PX}""")
        for i in range(3):
            k(f"ds_write_b128 {v(vT16)}, {v(A+8+4*i,4)} offset:{MEM+4096*i}")
        l0 = self.lab('t0')
        self.loaded(A + 22, 1)
        k(f"s_cmp_eq_u32 {s(sL)}, 0\ns_cbranch_scc1 {l0}")
        k.many(flat([fl_ld] + wait_h(1)))
        k("s_barrier")
        k.many(flat(x_dma()))
        k("s_waitcnt vmcnt(0)")
        k(f"{l0}:\ns_cmp_lg_u32 {s(sW)}, 1\ns_cbranch_scc1 {l0}a\ns_waitcnt vmcnt(1)\ns_branch {l0}b\n{l0}a:\ns_waitcnt vmcnt(0)\n{l0}b:\ns_barrier")
        self.pstamp(9)
        k.many([xread(hs) for hs in range(PD)] + x_adv)
        k.many([f"s_cmp_lg_u32 {s(sL)}, 0", f"s_cbranch_scc1 {l0}c"] + flat(x_dma()) + [f"{l0}c:"])
        self.warm_code('L_Ctop3', 'L_roleT', MF)
        if o.wring:
            k(f"""s_lshl_b32 {s(sT0)}, {s(sX)}, 20
            s_add_u32 {s(sT1)}, {s(sT0)}, {s(cOWN)}
            s_mul_i32 {s(sT2)}, {s(sT)}, 1536
            s_add_u32 {s(sT0)}, {s(sT0)}, {s(sT2)}
            s_add_u32 {s(sT0)}, {s(sT0)}, {R_X2}
            v_lshlrev_b32 {v(MF+4)}, 3, {v(vL16)}
            s_lshl_b32 {s(sT2)}, {s(sW)}, 18
            s_add_u32 {s(sT0)}, {s(sT0)}, {s(sT2)}
            s_and_b32 {s(sT2)}, {s(sT2)}, {SLOT}
            s_add_u32 {s(sT1)}, {s(sT1)}, {s(sT2)}
            buffer_load_dword {v(MF+5)}, {v(MF+4)}, {WS}, {s(sT1)} offen sc1
            s_mov_b64 exec, 0xfff
            buffer_load_dword {v(MF+6)}, {v(MF+4)}, {WS}, {s(sT0)} offen sc1
            s_mov_b64 exec, -1""")
        assert o.n5 + o.n6 <= 3 * PD
        q = list(zero_acc)
        xs(120 - o.n6, q)
        if o.fine:
            k.many(x_finish())
        k.many([f"s_cmp_eq_u32 {s(sL)}, 0", f"s_cbranch_scc1 {l0}d", fl_ld] + flat(wait_h(2)) + ["s_barrier"] + flat(x_dma()) + [f"{l0}d:"] + x_adv)
        k(f"""s_lshl_b32 {s(sSLOT)}, {s(sX)}, 20
        {fl_ld}
        s_waitcnt vmcnt(0) lgkmcnt(0)""")
        if not o.hm:
            k.many(flat(wait_h(3)))
        self.loaded(A + 22, 2)
        sXM3 = cB + 3
        for j in range(3):
            k(f"""s_add_u32 {s(sT0)}, {s(sW)}, {3*j}
            s_lshl_b32 {s(cB+j)}, {s(sT0)}, 12
            s_and_b32 {s(sT0)}, {s(cB+j)}, 0xe000
            s_add_u32 {s(cB+j)}, {s(cB+j)}, {s(sT0)}""")
        k(f"s_mul_i32 {s(sXM3)}, {s(sW)}, 3072\ns_add_u32 {s(sXM3)}, {s(sXM3)}, {s(sXM0)}")
        x_adv.append(f"s_xor_b32 {s(sXM3)}, {s(sXM3)}, 65536")
        self.pstamp(10)
        k(f"s_cmp_eq_u32 {s(sW)}, 3\ns_cbranch_scc1 L_Cin3\ns_branch L_Cin0")
        npos = [int(c, 16) for c in o.dpos + '0']
        assert sum(npos) == 10 and (o.hm == 0 or npos[5] == 10)

        def loop(w3):
            n = '3' if w3 else '0'
            TT = A + 24
            ag_ld = lambda b: [f"buffer_load_dwordx4 {v(b[0],4)}, {v(vT16)}, {WS}, {s(sA0)} offen sc1",
                               f"buffer_load_dwordx4 {v(b[1],4)}, {v(vT16)}, {WS}, {s(sA1)} offen sc1",
                               f"buffer_load_dwordx2 {v(b[2],2)}, {v(vT8)}, {WS}, {s(sA0)} offen sc1"]
            AGS = [(A + 12, A + 20, A + 16), (SUMM, SUMX, PM)][:1 if o.agm else o.aga]
            k(f"L_Ctop{n}:")
            xpos[0] = 120 - o.n5 - o.n6
            self.stamp(11)
            ag_use = lambda b: [f"ds_write_b128 {v(vT16)}, {v(b[0],4)} offset:{MEM}", f"ds_write_b128 {v(vT16)}, {v(b[1],4)} offset:{MEM+4096}",
                                f"ds_write_b64 {v(vT8)}, {v(b[2],2)} offset:{MEM}"]
            if o.agm:
                b = AGS[0]
                self.poll_lanes(list(zip(ag_ld(b), ((b[0], b[0] + 2), (b[1], b[1] + 2), (b[2],)))), TT, -1 if o.free else -2, sMSK, ag_use(b), 15, early=o.agm == 1)
            else:
                self.poll(AGS, ag_ld, lambda b: self.bad_empty((b[0], b[0] + 2, b[1], b[1] + 2, b[2]), TT), ag_use, 15, early=True)
            self.stamp(12)
            xs(o.n5)
            self.stamp(21)
            k(f"L_Cin{n}:\ns_barrier")
            self.stamp(0)
            KXF, QXF = XA, XA + 16
            mrd = [f"ds_read_b128 {v(MF+4*i,4)}, {v(vL16)} offset:{MEM+1024*i}" for i in range(10)]
            adr = [f"s_andn2_b32 {s(sS2)}, {s(sSLOT)}, {2*SLOT}", f"s_lshr_b32 {s(sTAG)}, {s(sS)}, 1",
                   f"s_add_u32 {s(sOWN)}, {s(sS2)}, {s(cOWN)}", f"s_add_u32 {s(sP1)}, {s(sS2)}, {s(cP1)}",
                   f"s_add_u32 {s(sP2)}, {s(sS2)}, {s(cP2)}",
                   [f"s_cmp_lt_u32 {s(sT)}, 20", f"s_cselect_b32 {s(sX2a)}, {s(sSLOT)}, {s(sH if o.hm else sHn)}"],
                   f"s_add_u32 {s(sX2b)}, {s(sX2a)}, {s(cX2)}", f"s_xor_b32 {s(sR1)}, {s(sSLOT)}, {2*SLOT}"]
            if w3:
                adr += x3_adr(sX3, sS2) + [f"s_xor_b32 {s(sA0+i)}, {s(sX3)}, {(i+1)<<18}" for i in range(3)]
            k.many(mrd[:o.nm0])
            mq = mrd[o.nm0:]
            xs(o.n6, mq, adr)
            k.many([fl_ld] if o.hm == 1 and not w3 else [])
            self.stamp(22)
            dma = x_dma3(w3) if o.d3 else x_dma()
            dq = []

            def dm(place):
                dq.extend(spaced([dma.pop(0) for _ in range(len(dma) if place == 5 else min(len(dma), npos[place]))], o.dsp))
                return dq

            def smf(acc, i, W):
                return f"v_smfmac_f32_16x16x64_bf16 {v(acc,4)}, {v(MF+4*i,4)}, {W(2*i,8)}, {v(vIDX)}"
            fin = x_finish() if not o.fine else []
            xpos[0] = 0
            QM, KM = FB, FB + 8
            S0, S1, SM = A + 12, A + 16, A + 20
            kx_rd = [[f"ds_read_b128 {v(KXF+8*kt+4*ks,4)}, {v(vL16)} offset:{XQ+4096+2048*kt+1024*ks}" for kt in range(2)] for ks in range(2)]
            qx_rd = [f"ds_read_b128 {v(QXF+4*ks,4)}, {v(vQXr)} offset:{XQ+1024*ks}" for ks in range(2)]
            early = o.fine and o.sxx
            if early:
                mq += flat(kx_rd) + qx_rd

            def scores(qf, c0, d0=S0, d1=S1):
                return [f"v_mfma_f32_16x16x32_bf16 {v(d,4)}, {v(x+4*ks,4)}, {v(qf+4*ks,4)}, {v(d,4) if ks else c}"
                        for ks in range(2) for d, x, c in ((SM, KM, 0), (d0, KXF, c0), (d1, KXF + 8, c0))]
            mq = spaced([[x] for x in mq], 1)
            SX0, SX1 = (FB + 16, FB + 20) if early else (S0, S1)
            sx = scores(QXF, v(MASK, 4), SX0, SX1)
            selx = select5(SUMX, SX0, SX1, SM, True)
            pubx = st5(SUMX, sOWN, True)
            vs = [(smf(AV, i, WV), None, None) for i in range(10)]
            if early:
                vs[o.nv0:o.nv0] = [(sx[i], None, None) for i in (1, 2, 4, 5)]
            pack(k, [x for i in range(10) for x in ((smf(AQ, i, WQ), None, None), (smf(AK, i, WK), f"need {v(MF+4*i+4,4)}" if i < 9 else None, None))] +
                 vs[:o.nv0], (mq, dm(0), fin, adr), fill=o.nv0)
            assert not flat(mq)
            self.stamp(1)
            for r in range(4):
                k(f"v_permlane32_swap_b32 {v(AQ+r)}, {v(AK+r)}")
            k.many(add4(AQ, AQ, AK, True))
            k(f"""v_cvt_pk_bf16_f32 {v(AQ)}, {v(AQ)}, {v(AQ+1)}
            v_cvt_pk_bf16_f32 {v(AQ+1)}, {v(AQ+2)}, {v(AQ+3)}
            ds_write_b64 {v(vQKw)}, {v(AQ,2)} offset:{QK}""")
            self.stamp(23)
            pack(k, vs[o.nv0:o.nv1], (dm(1), fin, adr))
            k.many(flat(fin + adr))
            k("s_barrier")
            self.stamp(2)
            rd = []
            for ks in range(2):
                for mat in range(2):
                    rd += [f"ds_read_b64_tr_b16 {v(FB+8*mat+4*ks+2*h,2)}, {v(vQKr)} offset:{QK+1024*mat+512*ks+64*h}" for h in range(2)]
                rd += [] if early else kx_rd[ks]
            k.many(rd[:4])
            q = rd[4:]
            xq = selx[4:] + ([] if o.sxx == 2 and not w3 else [99]) + pubx[:1] if early else []
            nv2 = o.nv1 + o.nv2 if early else 10
            pack(k, vs[o.nv1:nv2], (q, xq))
            k.many(q)
            q = [] if early else qx_rd
            self.stamp(24)
            sc = scores(QM, 0)
            nd = [f"need {x.split(', ')[1]}, {x.split(', ')[2]}" for x in sc[1:]] + [None]
            pack(k, list(zip(sc, nd, q + [None] * 6)), (xq, dm(6)), fill=2 if early else 0)
            self.stamp(25)
            vmerge = [f"v_permlane32_swap_b32 {v(AV)}, {v(AV+2)}", f"v_permlane32_swap_b32 {v(AV+1)}, {v(AV+3)}",
                      f"v_add_f32 {v(AV)}, {v(AV)}, {v(AV+2)}", f"v_add_f32 {v(AV+1)}, {v(AV+1)}, {v(AV+3)}"] + \
                [f"v_cvt_pk_bf16_f32 {v(d+2)}, {v(AV)}, {v(AV+1)}" for d in (VA, VB)]
            sel = select5(SUMM, S0, S1, SM, w3)
            pub = st5(SUMM, sOWN, False) if w3 else [[], []]
            k.many(flat(([] if early else vmerge[:4]) + sel[:4] + [pub[1]] + sel[4:] + [pub[0]]))
            self.stamp(3)
            WA = A + 12
            if early:
                k.many(flat(xq) + [xread(0), xread(1)])
                q = [xread(4), 2, xread(2), xread(3)]
                pack(k, [(sx[0], None, None), (sx[3], None, None)] + vs[nv2:], (q, dq))
                k.many(flat(q))
            else:
                k.many(vmerge[4:] + [xread(0), xread(1)])
                pack(k, [(x, None, r) for x, r in zip(sx, (xread(4), None, None, xread(2), xread(3), None))], (dq,))
            L2 = MF + 24
            X1S = [MF, MF + 12][:o.x1a]

            def x1_ld(b, x=False):
                p1, p2 = ld5(b, b + 8, sP1, x), ld5(b + 4, b + 9, sP2, x)
                return [p1[0], p2[0], p1[1], p2[1]]
            x1x_ld = x1_ld(L2, True)
            x1_bad = lambda b: self.bad_tag([b, b + 4, b + 8, b + 9], TT, sTAG)
            self.stamp(26)
            wa_zero = [f"v_mov_b64 {v(WA+2*i,2)}, 0" for i in range(4)]
            if early:
                pubx = pubx[1:]
            q = (selx[:4] if early else selx) + (pubx if o.xpub == 0 else []) + (vmerge if early else [])
            xs(o.n1a, dm(2), q)
            l = spaced([x1_ld(b) for b in X1S], o.x1d)[:-1] + ([o.xpub] + pubx if 0 < o.xpub < 99 else [])
            xs(o.n1b, l, q)
            assert not q
            k.many(flat(l))
            self.stamp(4)
            self.poll(X1S, x1_ld, x1_bad, lambda b: add5(SUMM, b, True), 11)
            self.stamp(5)
            d = flat(dm(3))
            del dq[:]
            f = [d[:3] or wa_zero[:2], d[3:] or wa_zero[2:]]
            f[o.x1p:o.x1p] = [x1x_ld[:2], x1x_ld[2:]]
            if o.xpub == 99:
                f = [st5(SUMX, sOWN, True), wa_zero[:2], wa_zero[2:], d]
                d = []
            if o.hm == 2 and not w3:
                f[2] = [fl_ld] + f[2]
            k.many(softmax5(SUMM, TT, f[:3]))
            k(f"""v_cvt_pk_bf16_f32 {v(PM+2)}, {v(SUMM+4)}, {v(SUMM+4)}
            v_cvt_pk_bf16_f32 {v(PM)}, {v(SUMM)}, {v(SUMM+1)}
            v_and_b32 {v(PM+2)}, {v(vMH)}, {v(PM+2)}
            v_cvt_pk_bf16_f32 {v(PM+1)}, {v(SUMM+2)}, {v(SUMM+3)}""")
            k.many(f[3])
            self.stamp(27)
            q = wa_zero[:2 * (len(d) // 3)]
            pack(k, [(f"v_mfma_f32_16x16x32_bf16 {v(dd,4)}, {v(x,4)}, {v(PM,4)}, 0", None, None) for dd, x in ((A + 8, ONES), (A, VA), (A + 4, VB))] +
                 xm(o.n1c), (q,), fill=2 + o.n1c)
            k.many(q)
            k(f"""v_add_f32_dpp {v(A+8)}, {v(A+8)}, {v(A+8)} row_ror:8 row_mask:0xf bank_mask:0xf
            v_rcp_f32 {v(A+8)}, {v(A+8)}""")
            for r in range(4):
                k(f"v_add_f32_dpp {v(A+r)}, {v(A+4+r)}, {v(A+r)} row_ror:8 row_mask:0xf bank_mask:0xf")
            k(f"""v_pk_mul_f32 {v(A,2)}, {v(A,2)}, {v(A+8,2)} op_sel_hi:[1,0]
            v_pk_mul_f32 {v(A+2,2)}, {v(A+2,2)}, {v(A+8,2)} op_sel_hi:[1,0]
            v_cvt_pk_bf16_f32 {v(A)}, {v(A)}, {v(A+1)}
            v_cvt_pk_bf16_f32 {v(A+1)}, {v(A+2)}, {v(A+3)}
            v_min_u32 {v(A)}, -2, {v(A)}
            buffer_store_dwordx2 {v(A,2)}, {v(vO2)}, {WS}, {s(sSLOT)} offen""")
            self.stamp(6)
            x2_ld = [f"buffer_load_dwordx4 {v(MF+4*u,4)}, {v(vO2l)}, {WS}, {s(sX2a if u < 4 else sX2b)} offen offset:{(u%4)*1024} sc1" for u in range(6)]
            l = ([2] + x1x_ld if o.xpub == 99 else []) + [o.x2i] + spaced([[x] for x in x2_ld], o.x2e)
            xs(o.n1d, l)
            if not o.nox & 1:
                self.poll([L2], lambda b: x1x_ld, x1_bad, lambda b: [], 12)
            sm = add5(SUMX, L2, False) + softmax5(SUMX, TT) + [f"v_cvt_pk_bf16_f32 {v(A+6)}, {v(SUMX+4)}, {v(SUMX+4)}",
                f"v_cvt_pk_bf16_f32 {v(A+4)}, {v(SUMX)}, {v(SUMX+1)}", f"v_cvt_pk_bf16_f32 {v(A+5)}, {v(SUMX+2)}, {v(SUMX+3)}",
                f"ds_write_b16 {v(vPw2)}, {v(A+6)} offset:{PX+8}", f"ds_write_b64 {v(vPw8)}, {v(A+4,2)} offset:{PX}"]
            self.stamp(28)
            xs(o.n2a, l, sm)
            k.many(flat(l))
            self.stamp(7)
            wo = lambda u: [f"v_smfmac_f32_16x16x64_bf16 {v(WA+4*t,4)}, {v(MF+4*u,4)}, {WO(2*u+t)}, {v(vIDX)}" for t in range(2)]
            x2_bad = lambda u: [f"v_max_u32 {v(A)}, {v(MF+4*u)}, {v(MF+4*u+2)}", f"v_cmp_lt_u32 vcc, {s(sLIM)}, {v(A)}"]
            if o.x2m:
                for u0 in range(0, 6, o.x2g):
                    us = range(u0, 6)
                    ok, rty = self.lab('wok'), self.lab('wrty')
                    b = [MF + 4 * u + j for u in range(u0, u0 + o.x2g) for j in (0, 2)]
                    first = [f"v_max_u32 {v(A)}, {v(b[0])}, {v(b[1])}"] + [f"v_max3_u32 {v(A)}, {v(A)}, {v(b[j])}, {v(b[j+1])}" for j in range(2, len(b), 2)] + \
                        [f"v_cmp_lt_u32 vcc, {s(sLIM)}, {v(A)}", f"s_cbranch_vccnz {rty}"]
                    k.many(first + [ok + ':'])
                    test = [x for u in us for x in (x2_bad(u)[0], f"v_cmp_lt_u32 {s(sMSK+2*u,2)}, {s(sLIM)}, {v(A)}")]
                    again = [x for u in us for x in (f"s_mov_b64 exec, {s(sMSK+2*u,2)}", x2_ld[u])] + ["s_mov_b64 exec, -1"]
                    self.ool.append([rty + ':'] + test + again + self.timeout(13) + ["s_waitcnt vmcnt(0)"] + first + [f"s_branch {ok}"])
                    ms = [(x, None, None) for u in range(u0, u0 + o.x2g) for x in wo(u)]
                    if u0 + o.x2g < 6:
                        pack(k, ms[:-1], (sm,))
                        k(ms[-1][0])
                    else:
                        pack(k, ms + xm(o.n2b), (sm,), fill=o.n2b)
            elif o.x2g:
                for u0 in range(0, 6, o.x2g):
                    chk, rty = self.lab('wchk'), self.lab('wrty')
                    b = [MF + 4 * u + j for u in range(u0, u0 + o.x2g) for j in (0, 2)]
                    k(f"{chk}:\nv_max_u32 {v(A)}, {v(b[0])}, {v(b[1])}")
                    for j in range(2, len(b), 2):
                        k(f"v_max3_u32 {v(A)}, {v(A)}, {v(b[j])}, {v(b[j+1])}")
                    k(f"v_cmp_lt_u32 vcc, {s(sLIM)}, {v(A)}\ns_cbranch_vccnz {rty}")
                    self.ool.append([rty + ':'] + x2_ld[u0:] + self.timeout(13) + [f's_branch {chk}'])
                    ms = [(x, None, None) for u in range(u0, u0 + o.x2g) for x in wo(u)]
                    if u0 + o.x2g < 6:
                        pack(k, ms[:-1], (sm,))
                        k(ms[-1][0])
                    else:
                        pack(k, ms + xm(o.n2b), (sm,), fill=o.n2b)
            else:
                again, done = self.lab('wagain'), self.lab('wdone')
                k(f"s_mov_b32 {s(sPEND)}, 0")
                second = [again + ':'] + self.timeout(13)
                for u in range(6):
                    miss, nx = self.lab('wmiss'), self.lab('wnext')
                    k.many(x2_bad(u) + [f"s_cbranch_vccnz {miss}"] + wo(u) + [nx + ':'])
                    self.ool.append([miss + ':', x2_ld[u] + " ;@late", f"s_bitset1_b32 {s(sPEND)}, {u}", f"s_branch {nx}"])
                    good, nx2 = self.lab('wgood'), self.lab('wnext')
                    second += [f"s_bitcmp1_b32 {s(sPEND)}, {u}", f"s_cbranch_scc0 {nx2}", "s_waitcnt vmcnt(0)"] + x2_bad(u) + [f"s_cbranch_vccnz {good}"] + wo(u) + \
                              [f"s_andn2_b32 {s(sPEND)}, {s(sPEND)}, {1<<u}", f"s_cbranch_scc0 {done}", f"s_branch {nx2}", good + ':', x2_ld[u] + " ;@late", nx2 + ':']
                k(f"s_cmp_lg_u32 {s(sPEND)}, 0\ns_cbranch_scc1 {again}\n{done}:")
                self.ool.append(second + [f"s_branch {again}"])
            self.stamp(8)
            if not o.x2g:
                xs(o.n2b, sm)
            for r in range(4):
                k(f"v_permlane32_swap_b32 {v(WA+r)}, {v(WA+4+r)}")
            k.many(add4(WA, WA, WA + 4, True))
            k(f"""ds_write2_b32 {v(vWRw)}, {v(WA)}, {v(WA+1)} offset0:0 offset1:32
            ds_write2_b32 {v(vWRw)}, {v(WA+2)}, {v(WA+3)} offset0:64 offset1:96""")
            self.stamp(29)
            k.many(flat(sm))
            q = wait_h(3) if o.hm and not w3 else []
            xs(o.n3a, dm(4), q)
            k.many(flat(q))
            self.stamp(30)
            k("s_barrier")
            self.stamp(9)
            PF, OXP = MF + 28, A + 16
            pv_rd = [f"ds_read_b64 {v(PF+8,2)}, {v(vL8)} offset:{PX+1536+1024}", f"ds_read_b128 {v(PF,4)}, {v(vL16)} offset:{PX}",
                     f"ds_read_b128 {v(PF+4,4)}, {v(vL16)} offset:{PX+1536}"]
            X3O, X3L = MF + 12, MF + 16
            rs = [f"buffer_store_dword {v(SENT)}, {v(vO2)}, {WS}, {s(sR1)} offen"]
            if w3:
                q = [f"ds_read_b128 {v(MF+12+4*w,4)}, {v(vL16)} offset:{WR+w*1024}" for w in range(4)] + pv_rd
                k.many(q[:2])
                q = q[2:]
                xs(o.n3b, q)
                k.many(q + add4(MF + 12, MF + 12, MF + 16, True) + add4(MF + 20, MF + 20, MF + 24, True) + add4(X3O, MF + 12, MF + 20, True))
                k(f"{tag(X3O)}\nbuffer_store_dwordx4 {v(X3O,4)}, {v(vX3)}, {WS}, {s(sX3)} offen sc1")
                rs.append(f"buffer_store_dword {v(SENT)}, {v(vAG)}, {WS}, {s(sR1)} offen")
            else:
                q = ([] if o.hm else [fl_ld]) + pv_rd
                k.many(q[:2])
                q = q[2:]
                xs(o.n3b, q)
                k.many(q)
            rs = [3] + spaced([[x] for x in rs], 3)
            self.stamp(10)
            pv = [f"v_mfma_f32_16x16x16_bf16 {v(A+12,4)}, {v(ONES,2)}, {v(PF+8,2)}, 0",
                  f"v_mfma_f32_16x16x16_bf16 {v(A+4,4)}, {v(VB,2)}, {v(PF+8,2)}, 0",
                  f"v_mfma_f32_16x16x32_bf16 {v(A+8,4)}, {v(ONES,4)}, {v(PF,4)}, 0",
                  f"v_mfma_f32_16x16x32_bf16 {v(A,4)}, {v(VA,4)}, {v(PF,4)}, 0",
                  f"v_mfma_f32_16x16x32_bf16 {v(A+12,4)}, {v(ONES,4)}, {v(PF+4,4)}, {v(A+12,4)}",
                  f"v_mfma_f32_16x16x32_bf16 {v(A+4,4)}, {v(VA,4)}, {v(PF+4,4)}, {v(A+4,4)}"]
            pv = [(x, None, None) for x in pv]
            pack(k, pv[:4] + xm(3) + pv[4:], (rs,))
            self.stamp(31)
            e = []
            for mt in range(2):
                e += [f"v_rcp_f32 {v(A+8+4*mt)}, {v(A+8+4*mt)}"] + [f"v_mul_f32 {v(A+4*mt+r)}, {v(A+4*mt+r)}, {v(A+8+4*mt)}" for r in range(4)]
                e += [f"v_cvt_pk_bf16_f32 {v(OXP+2*mt+i)}, {v(A+4*mt+2*i)}, {v(A+4*mt+2*i+1)}" for i in range(2)]
                e += [f"buffer_store_dwordx2 {v(OXP+2*mt,2)}, {v(vOX)}, {WS}, {s(sOXB)} offen offset:{2048*mt} ;@w=ox"]
            e += [[f"s_cmp_eq_u32 {s(sS)}, 63", "s_cbranch_scc1 L_Clast"]]
            ad = self.adv(sOXB, 8 * 49152)
            e += ad[:2] + [ad[2:4], ad[4]] + zero_acc
            flag = [f"v_add_u32 {v(TT)}, {s(sS)}, 1".replace('v_add_u32', 'v_add_u32_e64'),
                    f"buffer_store_dword {v(TT)}, {v(vLane0)}, {WS}, {s(sFLOC)} offen ;@r=ox"]
            if o.stamps == 6:
                flag.append(["s_mov_b64 exec, 1", f"s_add_u32 s36, {s(sS)}, 1"] + self.trace(TT, 's36') + ["s_mov_b64 exec, -1"])
            nxt = [f"s_add_u32 {s(sA0)}, {s(sSLOT)}, {R_AG}", f"s_add_u32 {s(sA1)}, {s(sSLOT)}, {R_AG+4096}"]
            nxt2 = [f"s_add_u32 {s(sX2b)}, {s(sSLOT)}, {SLOT}", f"s_and_b32 {s(sX2b)}, {s(sX2b)}, {3*SLOT}",
                    f"s_andn2_b32 {s(sSLOT)}, {s(sSLOT)}, {3*SLOT}", f"s_or_b32 {s(sSLOT)}, {s(sSLOT)}, {s(sX2b)}"] + x_adv
            rest = 120 - o.n4 - o.n5 - o.n6 - xpos[0] - o.n3c - o.n3d
            assert rest >= 0, rest
            if w3:
                x3_ld = lambda b: [f"buffer_load_dwordx4 {v(b+4*i,4)}, {v(vX3)}, {WS}, {s(sA0+i)} offen sc1" for i in range(3)]
                X3S = [MF + 16, MF][:o.x3a]
                x3_bad = lambda b: self.bad_tag([b, b + 4, b + 8], TT, sTAG)
                x3_use = lambda b: add4(X3O, X3O, b, True) + add4(b + 4, b + 4, b + 8, True) + add4(X3O, X3O, b + 4, True)
                pub = [f"v_cvt_pk_bf16_f32 {v(X3O)}, {v(X3O)}, {v(X3O+1)}", f"v_cvt_pk_bf16_f32 {v(X3O+1)}, {v(X3O+2)}, {v(X3O+3)}",
                       f"v_min_u32 {v(X3O)}, -2, {v(X3O)}", f"buffer_store_dwordx2 {v(X3O,2)}, {v(vAG)}, {WS}, {s(sSLOT)} offen"]
                tmp = Asm()
                self.k = tmp
                self.stamp(34)
                self.k = k
                pub += [it.text for _, it in tmp.items] + (["s_barrier"] if o.b5 else [])
                xs(o.n3c, rs, e)
                self.stamp(32)
                l = spaced([x3_ld(b) for b in X3S], o.x3d)
                xs(o.n3d, l, *([] if o.ad3 else [dm(5)]), rs, e)
                k.many(flat(l + e[:max(0, len(e) - 10)]))
                e = e[max(0, len(e) - 10):]
                self.stamp(33)
                segs = []
                for j in range(o.adn if o.ad3 else 0):
                    b, got = X3S[j % len(X3S)], self.lab('got')
                    tmp = Asm()
                    pack(tmp, xm(o.x3d), (rs, e))
                    segs.append([f"L_C3b{j}:"] + [it.text for _, it in tmp.items])
                    k.many(x3_bad(b) + [f"s_cbranch_vccz {got}"] + segs[-1][1:2] + x3_ld(b) + segs[-1][2:])
                    self.ool.append([got + ':'] + x3_use(b) + pub + [f"s_branch L_C3b{j}"])
                    rest -= o.x3d
                assert rest >= 0
                j = len(segs) % len(X3S)
                self.poll(X3S[j:] + X3S[:j], x3_ld, x3_bad, x3_use, 14)
                k.many(pub + ["L_C3c:"])
                if segs:
                    self.ool.append(flat(segs) + ["s_branch L_C3c"])
                e += flag
                xs(rest, nxt, dm(5), rs, e)
            else:
                e += [o.fgap] + flag + ([] if o.hm else wait_h(4))
                xs(o.n3e, rs, e)
                if o.b5:
                    r0 = o.rest0 if o.ad3 else rest
                    assert o.n3c + o.n3d + rest - r0 - o.n3e >= 0
                    xs(o.n3c + o.n3d + rest - r0 - o.n3e, nxt, dm(5), rs, e)
                    k.many(flat(dq))
                    del dq[:]
                    k("s_barrier")
                    xs(r0, nxt, rs, e)
                else:
                    xs(o.n3c + o.n3d + rest - o.n3e, nxt, dm(5), rs, e)
            k.many(flat(nxt + dq + rs))
            self.stamp(35)
            l = spaced([ag_ld(b) for b in AGS], o.agd)
            xs(o.n4, l, e, nxt2)
            k.many(flat(l + e + nxt2))
            if o.fine:
                k.many(x_finish())
            self.stamp(20)
            self.stamps_out(13, TT)
            k(f"s_add_u32 {s(sS)}, {s(sS)}, 1\ns_branch L_Ctop{n}")
            self.flush_ool()
        self.flush_ool()
        n0 = len(k.items)
        loop(True)
        loop(False)
        if o.nox:
            drop = ([f"{v(vL16x)},", f"{v(vL4x)},"] if o.nox & 1 else []) + ([f"{v(vOX)}, s", f"{v(vLane0)}, s", f"{v(vFl)}, s"] if o.nox & 2 else [])
            k.items[n0:] = [x for x in k.items[n0:] if not (x[0] == 'ins' and x[1].is_vm and any(d in x[1].text for d in drop))]
        k.many(['L_Clast:', 's_waitcnt vmcnt(0)'] + self.put_flag(A, 64, False))
        self.pstamp(11)
        k('s_endpgm')

    def role_T(self):
        k, o = self.k, self.o
        k("L_roleT:")
        if not self.role_gate('T'):
            return
        WL = 98304
        V = Alloc(4, 256)
        S = Alloc(S_FREE, 102)
        vL = 1
        WV_ = V(160, 4)
        ACC, FB, WB, PK = V(40, 4), V(16, 4), V(16, 4), V(2, 2)
        vT16, vRd, vWr, vSt, vStC, vFl = (V() for _ in range(6))
        FL = V()
        sIN, sOB, sOUT, sBUF, sPRE, sNH, sKH, sO1, sO2 = (S() for _ in range(9))

        def W(ks, t, c=4, o=0):
            if t < 4:
                n = 4 * ks + t
                return a(4 * n + o, c) if n < 64 else v(WV_ + 4 * (n - 64) + o, c)
            return v(WV_ + 128 + 4 * (ks - 16) + o, c) if ks >= 16 else v(WB + 4 * (ks & 3) + o, c)
        srd(k, S_D, P_WO, 6144 * 1280)
        t0, t1, t2, t3, t4, t5, t6, t7 = range(ACC, ACC + 8)
        k(f"""v_and_b32 {v(vL)}, 63, v0
        s_and_b32 {s(sNH)}, {s(sT)}, 1
        s_bfe_u32 {s(sKH)}, {s(sT)}, 0x10001
        s_lshl_b32 {s(sT0)}, {s(sHG)}, 1
        s_add_u32 {s(sKH)}, {s(sKH)}, {s(sT0)}
        s_mul_i32 {s(sT0)}, {s(sKH)}, {768*1280}
        s_mul_i32 {s(sT1)}, {s(sW)}, {8*1280}
        s_add_u32 {s(sT0)}, {s(sT0)}, {s(sT1)}
        s_lshl_b32 {s(sT1)}, {s(sNH)}, 8
        s_add_u32 {s(sT1)}, {s(sT1)}, {s(sT0)}
        v_lshrrev_b32 {v(t0)}, 4, {v(vL)}
        v_mul_u32_u24 {v(t0)}, 1280, {v(t0)}
        v_and_b32 {v(t2)}, 15, {v(vL)}
        v_lshl_add_u32 {v(t0)}, {v(t2)}, 4, {v(t0)}
        v_add_u32 {v(t0)}, {s(sT1)}, {v(t0)}
        s_lshl_b32 {s(sT1)}, {s(sNH)}, 7
        s_add_u32 {s(sT1)}, {s(sT1)}, {s(sT0)}
        s_add_u32 {s(sT1)}, {s(sT1)}, 1024
        v_lshrrev_b32 {v(t1)}, 3, {v(vL)}
        v_mul_u32_u24 {v(t1)}, 1280, {v(t1)}
        v_and_b32 {v(t2)}, 7, {v(vL)}
        v_lshl_add_u32 {v(t1)}, {v(t2)}, 4, {v(t1)}
        v_add_u32 {v(t1)}, {s(sT1)}, {v(t1)}
        v_lshrrev_b32 {v(t2)}, 4, {v(vL)}
        v_lshlrev_b32 {v(t2)}, 3, {v(t2)}
        v_bfe_u32 {v(t3)}, {v(vL)}, 2, 2
        v_add_u32 {v(t2)}, {v(t2)}, {v(t3)}
        v_and_b32 {v(t3)}, 3, {v(vL)}
        v_lshlrev_b32 {v(t4)}, 7, {v(t2)}
        v_lshl_add_u32 {v(t4)}, {v(t3)}, 3, {v(t4)}
        s_lshl_b32 {s(sT0)}, {s(sW)}, 5
        v_add_u32 {v(t4)}, {s(sT0)}, {v(t4)}
        v_lshlrev_b32 {v(t2)}, 1, {v(t4)}
        v_add_u32 {v(t3)}, 40960, {v(t2)}
        v_add_u32 {v(t5)}, 40960, {v(t4)}
        v_lshlrev_b32 {v(vT16)}, 4, v0
        v_lshlrev_b32 {v(vRd)}, 4, {v(vL)}
        s_lshl_b32 {s(sT0)}, {s(sW)}, 14
        s_add_u32 {s(sT0)}, {s(sT0)}, {WL}
        v_add_u32 {v(vWr)}, {s(sT0)}, {v(vRd)}
        s_lshl_b32 {s(sIN)}, {s(sW)}, 11
        s_lshl_b32 {s(sOUT)}, {s(sW)}, 10""")

        def stage(ks):
            sl = (ks % 4) * 20480
            for part in range(2):
                for i in range(2):
                    k(f"""s_mov_b32 {s(sT0)}, {(32*ks+4*i)*1280+512*part}
                    s_add_u32 m0, {s(sIN)}, {sl+8192*part+1024*i}
                    buffer_load_dwordx4 {v(t0)}, {s(S_D,4)}, {s(sT0)} offen lds""")
            k(f"""s_mov_b32 {s(sT0)}, {32*ks*1280}
            s_add_u32 m0, {s(sOUT)}, {sl+16384}
            buffer_load_dwordx4 {v(t1)}, {s(S_D,4)}, {s(sT0)} offen lds""")
        for ks in range(3):
            stage(ks)
        self.arrive0(15, 1)
        for ks in range(24):
            k(f"s_waitcnt vmcnt({min(10, 5*(23-ks))})")
            self.barrier()
            if ks + 3 < 24:
                stage(ks + 3)
            if ks == 2:
                self.arrive0(0, 2)
            sl = (ks % 2) * 20480
            hi = (ks % 4) >= 2
            for t in range(4):
                for h in range(2):
                    k(f"ds_read_b64_tr_b16 {W(ks,t,2,2*h)}, {v(t3 if hi else t2)} offset:{sl+8192*(t>>1)+1024*h+8*(t&1)}")
            for h in range(2):
                k(f"ds_read_b64_tr_b16 {W(ks,4,2,2*h)}, {v(t5 if hi else t4)} offset:{sl+16384+512*h}")
            if ks < 16:
                k(f"ds_write_b128 {v(vWr)}, {W(ks,4)} offset:{ks*1024}")
        k(f"""v_and_b32 {v(t0)}, 15, {v(vL)}
        v_lshrrev_b32 {v(t1)}, 4, {v(vL)}
        v_lshlrev_b32 {v(vStC)}, 5, {v(t0)}
        v_lshl_add_u32 {v(vStC)}, {v(t1)}, 3, {v(vStC)}
        v_lshlrev_b32 {v(vSt)}, 1, {v(vStC)}
        s_lshl_b32 {s(sT0)}, {s(sNH)}, 2
        s_add_u32 {s(sT0)}, {s(sT0)}, {s(sW)}
        s_lshl_b32 {s(sT0)}, {s(sT0)}, 10
        v_add_u32 {v(vSt)}, {s(sT0)}, {v(vSt)}
        s_add_u32 {s(sT0)}, {s(sT0)}, 65536
        v_add_u32 {v(vStC)}, {s(sT0)}, {v(vStC)}
        v_min_u32 {v(vFl)}, 47, {v(vL)}
        s_and_b32 {s(sT0)}, {s(sKH)}, 1
        s_mul_i32 {s(sT0)}, {s(sT0)}, 48
        s_lshl_b32 {s(sT1)}, {s(sX)}, 7
        s_add_u32 {s(sT0)}, {s(sT0)}, {s(sT1)}
        v_add_u32 {v(vFl)}, {s(sT0)}, {v(vFl)}
        v_lshlrev_b32 {v(vFl)}, 7, {v(vFl)}
        v_add_u32 {v(vFl)}, {FLAGS}, {v(vFl)}
        s_mul_i32 {s(sIN)}, {s(sKH)}, 49152
        s_mul_i32 {s(sT0)}, {s(sL)}, {OXL}
        s_add_u32 {s(sIN)}, {s(sIN)}, {s(sT0)}
        s_add_u32 {s(sIN)}, {s(sIN)}, {OX}
        s_mul_i32 {s(sOB)}, {s(sKH)}, {PART}
        s_add_u32 {s(sOB)}, {s(sOB)}, {PA}
        s_lshr_b32 {s(sBUF)}, {s(sW)}, 1
        s_lshl_b32 {s(sBUF)}, {s(sBUF)}, 12
        s_and_b32 {s(sT0)}, {s(sW)}, 1
        s_lshl_b32 {s(sT0)}, {s(sT0)}, 10
        s_add_u32 {s(sBUF)}, {s(sBUF)}, {s(sT0)}
        v_add_u32 {v(vT16)}, {s(sBUF)}, {v(vRd)}
        s_mov_b32 {s(sPRE)}, 0""")
        self.pstamp(7)
        self.wait_grid()
        self.get_par()
        self.warm_code('L_Tseg', 'L_roleB', FB)
        if o.wring:
            k(f"""v_lshlrev_b32 {v(FB+4)}, 7, v0
            s_mul_i32 {s(sT0)}, {s(sNH)}, 16384
            s_add_u32 {s(sT0)}, {s(sT0)}, {s(sIN)}""")
            for i in range(o.oxr):
                k(f"buffer_load_dword {v(FB+5)}, {v(FB+4)}, {WS}, {s(sT0)} offen sc1\ns_add_u32 {s(sT0)}, {s(sT0)}, {8*49152}")
        self.pstamp(8)
        fl_ld = f"buffer_load_dword {v(FL)}, {v(vFl)}, {WS}, 0 offen sc1"

        def dma(add, gap):
            out = []
            for i in range(12):
                off = (i % 6) * 8192 + (i // 6) * 2048
                out += [f"s_add_u32 m0, {s(sBUF)}, {off}", f"s_add_u32 {s(sT0)}, {s(sIN)}, {off}",
                        f"buffer_load_dwordx4 {v(vT16)}, {WS}, {s(sT0)} offen sc1 lds"] + gap
            ad = self.adv(sIN, 8*49152, add)
            return out + ad[:2] + [ad[2:4], ad[4], f"s_xor_b32 {s(sBUF)}, {s(sBUF)}, 49152"]

        def rd(n):
            mt, ks = divmod(n, 24)
            return [f"ds_read_b128 {v(FB+4*(n&3),4)}, {v(vRd)} offset:{(ks>>1)*4096+mt*2048+(ks&1)*1024}"] + \
                ([f"ds_read_b128 {W(ks,4)}, {v(vWr)} offset:{ks*1024}"] if ks < 16 else [])

        def steps(n0, n1):
            out = []
            for n in range(n0, n1):
                mt, ks = divmod(n, 24)
                r = (rd(n + 3) if n + 3 < 48 else []) + [None, None]
                nx = (n + 1) % 24
                for t in range(5):
                    acc = v(ACC + 20 * mt + 4 * t, 4)
                    out.append((f"v_mfma_f32_16x16x32_bf16 {acc}, {W(ks,t)}, {v(FB+4*(n&3),4)}, {acc if ks else 0}",
                                f"need {v(FB+4*((n+1)&3),4)}, {W(nx,4)}" if t == 4 and n + 1 < n1 else None, r[t] if t < 2 else None))
            return out

        def finish(mt):
            b = ACC + 20 * mt
            c = [f"v_cvt_pk_bf16_f32 {v(b+i)}, {v(b+2*i)}, {v(b+2*i+1)}" for i in range(10)]
            return [f"s_add_u32 {s(sO1)}, {s(sOUT)}, {16384*mt}", f"s_add_u32 {s(sO2)}, {s(sOUT)}, {16384*(2+mt)}"] + c[:4] + \
                [f"buffer_store_dwordx4 {v(b,4)}, {v(vSt)}, {WS}, {s(sO1)} offen sc1"] + c[4:8] + \
                [f"buffer_store_dwordx4 {v(b+4,4)}, {v(vSt)}, {WS}, {s(sO2)} offen sc1"] + c[8:] + \
                [f"buffer_store_dwordx2 {v(b+8,2)}, {v(vStC)}, {WS}, {s(sOUT)} offen offset:{mt*512} sc1"]
        flat = lambda L: [x for g in L for x in (g if isinstance(g, (list, tuple)) else [g]) if isinstance(x, str)]

        def flag(add):
            return [f"s_lshl_b32 {s(sT1)}, {s(sS)}, 1", f"s_add_u32 {s(sT1)}, {s(sT1)}, {add}", "s_waitcnt vmcnt(0)"] + self.put_flag(PK, s(sT1))
        self.sST = 32
        k(f"""L_Tseg:
        s_cmp_lg_u32 {s(sPRE)}, 0
        s_cbranch_scc1 L_Thave
        {fl_ld}""")
        k.many(flag(0) + [f"s_add_u32 {s(sT1)}, {s(sS)}, 1"])
        self.check_flags(FL, sT1, [fl_ld], 20)
        k.many(flat(dma(1, [])))
        k("s_waitcnt vmcnt(10)\nL_Thave:")
        self.stamp(0)
        k("s_waitcnt vmcnt(13)\ns_barrier")
        self.stamp(1)
        k.many(rd(0) + rd(1) + rd(2))
        q = self.near(sOUT, sOB) + [f"s_add_u32 {s(sOB)}, {s(sOB)}, {MB}"]
        pack(k, steps(0, 5), (q,))
        k("s_waitcnt vmcnt(6)\ns_barrier")
        pack(k, steps(5, o.tflag), ())
        k(f"s_cmp_eq_u32 {s(sPRE)}, 0\ns_cbranch_scc1 L_Tnofl")
        k.many(flag(0))
        k("L_Tnofl:")
        pack(k, steps(o.tflag, 21), ())
        k("s_waitcnt vmcnt(0)\ns_barrier")
        pack(k, steps(21, 25), ())
        self.stamp(2)
        q = finish(0)
        pack(k, steps(25, 24 + o.tf1), (q,))
        assert not q
        k.many(flag(1))
        q = [1 + 5 * (o.tsamp - o.tf1), fl_ld]
        pack(k, steps(24 + o.tf1, 24 + o.tpre), (q,))
        assert not q
        k(f"""s_add_u32 {s(sT1)}, {s(sS)}, 2
        v_cmp_gt_u32 vcc, {s(sT1)}, {v(FL)}
        s_mov_b32 {s(sPRE)}, 0
        s_cbranch_vccz L_Tpre""")
        pack(k, steps(24 + o.tpre, 48), ())
        k("L_Tend:")
        self.stamp(3)
        k(f"v_xor_b32 {v(vRd)}, 49152, {v(vRd)}")
        k.many(finish(1))
        self.stamp(4)
        self.stamps_out(5, FB)
        k(f"""s_add_u32 {s(sS)}, {s(sS)}, 1
        s_cmp_lt_u32 {s(sS)}, 64
        s_cbranch_scc1 L_Tseg""")
        k.many(flag(0))
        k(f"s_endpgm\nL_Tpre:\ns_mov_b32 {s(sPRE)}, 1")
        q = dma(2, [o.tgap] if o.tgap else [])
        pack(k, steps(24 + o.tpre, 48), (q,))
        k.many(flat(q) + ["s_branch L_Tend"])
        self.flush_ool()

    def role_B(self):
        k, o = self.k, self.o
        k("L_roleB:")
        if not self.role_gate('B'):
            return
        OB, MK, XT = 0, 5120, 8192
        V = Alloc(4, 256)
        S = Alloc(S_FREE, 102)
        vL = 1
        WS_, WO_ = V(80, 4), V(84, 4)
        ACC, FB, OF1 = V(36, 4), V(12, 4), V(4, 4)
        Q, KA, KB, VM, VE = (V(4, 4) for _ in range(5))
        OF2, vRdy, vRdr = V(2, 2), 3, vL
        vE, vOne, vT16, vXr0, vXr1, vL16, vMk0, vOw, vOw2, vSt, vStC, vFl, FL, vL8 = (V() for _ in range(14))
        sIN, sIB, sOB, sOUT, sBUF, sPRE, sB, sC, sO1, sO2, sPEND = (S() for _ in range(11))

        def W(m, ks, c=4, o=0):
            return a(80 * m + 4 * ks + o, c) if m < 3 else v(WS_ + 4 * ks + o, c)

        def WO(n, part, c, o=0):
            if part == 2:
                return a(240 + 2 * n + o, c) if n < 8 else v(WO_ + 80 + 2 * (n - 8) + o, c)
            return v(WO_ + 8 * n + 4 * part + o, c)
        srd(k, S_C, P_WQKV, 640 * 3840)
        srd(k, S_D, P_BWO, 640 * 1280)
        t0, t1, t2, t3, t4, t5, t6, t7 = range(ACC, ACC + 8)
        g_, rr, c_ = ACC + 8, ACC + 9, ACC + 10
        k(f"""v_and_b32 {v(vL)}, 63, v0
        s_lshl_b32 {s(sB)}, {s(sHG)}, 1
        s_and_b32 {s(sT0)}, {s(sT)}, 1
        s_add_u32 {s(sB)}, {s(sB)}, {s(sT0)}
        v_lshrrev_b32 {v(g_)}, 4, {v(vL)}
        v_bfe_u32 {v(rr)}, {v(vL)}, 2, 2
        v_and_b32 {v(c_)}, 3, {v(vL)}
        v_lshlrev_b32 {v(vL16)}, 4, {v(vL)}
        ; staging source: 2 rows per instruction, 30 pieces + 2 zero pieces per row
        v_and_b32 {v(t1)}, 31, {v(vL)}
        v_mul_u32_u24 {v(t2)}, 26, {v(t1)}
        v_lshrrev_b32 {v(t2)}, 8, {v(t2)}
        v_mul_u32_u24 {v(t0)}, {1280-160}, {v(t2)}
        v_lshl_add_u32 {v(t0)}, {v(t1)}, 4, {v(t0)}
        v_lshrrev_b32 {v(t2)}, 5, v0
        v_mul_u32_u24 {v(t2)}, 3840, {v(t2)}
        s_mul_i32 {s(sT0)}, {s(sB)}, 160
        v_add3_u32 {v(t0)}, {v(t0)}, {v(t2)}, {s(sT0)}
        v_mov_b32 {v(t2)}, {OOB:#x}
        v_cmp_gt_u32 vcc, 30, {v(t1)}
        v_cndmask_b32 {v(t0)}, {v(t2)}, {v(t0)}, vcc
        v_lshl_add_u32 {v(t1)}, {v(g_)}, 3, {v(rr)}
        v_lshlrev_b32 {v(t1)}, 9, {v(t1)}
        s_mul_i32 {s(sT0)}, {s(sW)}, 40
        v_mul_u32_u24 {v(t3)}, 160, {v(c_)}
        s_add_u32 {s(sT1)}, {s(sT0)}, 32
        v_mov_b32 {v(t4)}, {s(sT1)}
        v_cmp_gt_u32 vcc, 3, {v(c_)}
        v_cndmask_b32 {v(t4)}, 0, {v(t4)}, vcc
        v_add3_u32 {v(t3)}, {v(t3)}, {v(t4)}, {v(t1)}
        v_lshl_add_u32 {v(t1)}, {v(c_)}, 3, {v(t1)}
        v_add_u32 {v(t1)}, {s(sT0)}, {v(t1)}
        v_add_u32 {v(t2)}, 65536, {v(t1)}
        v_add_u32 {v(t4)}, 65536, {v(t3)}
        v_lshl_add_u32 {v(t5)}, {v(c_)}, 2, {v(rr)}
        v_lshl_add_u32 {v(t5)}, {v(g_)}, 4, {v(t5)}
        v_lshlrev_b32 {v(t5)}, 2, {v(t5)}
        s_lshl_b32 {s(sIN)}, {s(sW)}, 10""")

        def stage(ks):
            for i in range(4):
                k(f"""s_mov_b32 {s(sT0)}, {(32*ks+8*i)*3840}
                s_add_u32 m0, {s(sIN)}, {(ks%8)*16384+4096*i}
                buffer_load_dwordx4 {v(t0)}, {s(S_C,4)}, {s(sT0)} offen {NT}lds""")
        self.arrive0(0)
        for ks in range(7):
            stage(ks)
        for ks in range(20):
            k(f"s_waitcnt vmcnt({min(24, 4*(19-ks))})")
            self.barrier()
            if ks + 7 < 20:
                stage(ks + 7)
            sl = (ks % 4) * 16384
            hi = (ks % 8) >= 4
            for h in range(2):
                k(f"ds_read_b64_tr_b16 {v(FB+2*h,2)}, {v(t4 if hi else t3)} offset:{sl+2048*h}")
            for m in range(3):
                for h in range(2):
                    k(f"ds_read_b64_tr_b16 {W(m,ks,2,2*h)}, {v(t2 if hi else t1)} offset:{sl+2048*h+160*m}")
            for r in range(4):
                k(f"ds_bpermute_b32 {W(3,ks,1,r)}, {v(t5)}, {v(FB+r)}")
        self.barrier()
        lp = self.lab('stgb')
        k(f"""v_lshlrev_b32 {v(t0)}, 4, v0
        s_mul_i32 {s(sT0)}, {s(sB)}, {80*1280}
        s_add_u32 {s(sT1)}, {s(sT0)}, {80*1280}
        s_mov_b32 m0, {s(sIN)}
        {lp}:
        buffer_load_dwordx4 {v(t0)}, {s(S_D,4)}, {s(sT0)} offen {NT}lds
        s_add_u32 m0, m0, 4096
        s_add_u32 {s(sT0)}, {s(sT0)}, 4096
        s_cmp_lt_u32 {s(sT0)}, {s(sT1)}
        s_cbranch_scc1 {lp}
        v_lshl_add_u32 {v(t1)}, {v(g_)}, 2, {v(rr)}
        v_mul_u32_u24 {v(t1)}, 1280, {v(t1)}
        v_mul_u32_u24 {v(t3)}, 20, {v(rr)}
        v_add3_u32 {v(t3)}, {v(t3)}, {v(g_)}, 16
        v_mul_u32_u24 {v(t3)}, 1280, {v(t3)}
        s_lshl_b32 {s(sT0)}, {s(sW)}, 6
        v_lshl_add_u32 {v(t5)}, {v(c_)}, 3, {s(sT0)}
        v_add_u32 {v(t2)}, {v(t1)}, {v(t5)}
        v_add_u32 {v(t4)}, {v(t3)}, {v(t5)}
        v_lshl_add_u32 {v(t1)}, {v(t5)}, 1, {v(t1)}
        v_lshl_add_u32 {v(t3)}, {v(t5)}, 1, {v(t3)}
        v_add_u32 {v(t6)}, 51200, {v(t1)}
        v_add_u32 {v(t7)}, 51200, {v(t2)}
        s_waitcnt vmcnt(0)
        s_barrier""")
        for vi in range(2):
            for t in range(5):
                col = vi * 64 + 512 * (t >> 1) + 8 * (t & 1) if t < 4 else 1024 + vi * 32
                for kk in range(2):
                    for h in range(2):
                        base = ((t1, t6), (t2, t7))[t == 4][kk]
                        k(f"ds_read_b64_tr_b16 {WO(5*vi+t,kk,2,2*h)}, {v(base)} offset:{h*25600+col}")
                k(f"ds_read_b64_tr_b16 {WO(5*vi+t,2,2)}, {v(t4 if t == 4 else t3)} offset:{col}")
        self.barrier()
        j_, hf, u0, u1 = ACC + 11, ACC + 12, ACC + 13, ACC + 14
        k(f"""v_and_b32 {v(j_)}, 7, {v(vL)}
        v_bfe_u32 {v(hf)}, {v(vL)}, 3, 1
        v_lshlrev_b32 {v(vT16)}, 4, v0
        v_lshlrev_b32 {v(vL8)}, 3, {v(vL)}
        v_mul_u32_u24 {v(vXr0)}, 10240, {v(hf)}
        v_lshl_add_u32 {v(vXr0)}, {v(j_)}, 7, {v(vXr0)}
        v_xor_b32 {v(u0)}, {v(g_)}, {v(j_)}
        v_lshl_add_u32 {v(vXr0)}, {v(u0)}, 4, {v(vXr0)}
        v_xor_b32 {v(vXr1)}, 64, {v(vXr0)}
        v_and_b32 {v(t0)}, 15, {v(vL)}
        v_lshlrev_b32 {v(u0)}, 2, {v(g_)}
        v_cmp_eq_u32 vcc, {v(t0)}, {v(u0)}
        v_cndmask_b32 {v(vE)}, 0, 1.0, vcc
        v_mov_b32 {v(u1)}, 0x3f803f80
        v_cmp_eq_u32 vcc, 1, {v(c_)}
        v_cndmask_b32 {v(vOne)}, 0, {v(u1)}, vcc
        v_sub_u32 {v(u0)}, {v(t0)}, {v(u0)}
        v_mov_b32 {v(u1)}, 0xff800000""")
        for blk, add in ((0, 16), (1, 0)):
            for r in range(4):
                k(f"""v_add_u32 {v(t1)}, {add-r}, {v(u0)}
                v_and_b32 {v(t1)}, 0xfffffff1, {v(t1)}
                v_cmp_eq_u32 vcc, 0, {v(t1)}
                v_cndmask_b32 {v(FB+4*blk+r)}, {v(u1)}, 0, vcc""")
        for r in range(4):
            k(f"v_mov_b32 {v(FB+8+r)}, {v(u1)}")
        for r in range(Q, Q + 20):
            k(f"v_mov_b32 {v(r)}, 0")
        for blk in range(3):
            k(f"ds_write_b128 {v(vL16)}, {v(FB+4*blk,4)} offset:{MK+1024*blk}")
        k(f"""        v_add_u32 {v(vMk0)}, 2048, {v(vL16)}
        s_lshr_b32 {s(sT0)}, {s(sW)}, 1
        s_lshl_b32 {s(sT0)}, {s(sT0)}, 10
        s_and_b32 {s(sT1)}, {s(sW)}, 1
        s_lshl_b32 {s(sT1)}, {s(sT1)}, 3
        s_add_u32 {s(sT0)}, {s(sT0)}, {s(sT1)}
        v_add_u32 {v(vOw)}, {s(sT0)}, {v(vL16)}
        s_lshl_b32 {s(sT0)}, {s(sW)}, 1
        v_lshl_add_u32 {v(vOw2)}, {v(vL)}, 3, {s(sT0)}
        v_lshlrev_b32 {v(vStC)}, 5, {v(t0)}
        v_lshl_add_u32 {v(vStC)}, {v(g_)}, 3, {v(vStC)}
        v_lshlrev_b32 {v(vSt)}, 1, {v(vStC)}
        s_lshl_b32 {s(sT0)}, {s(sW)}, 11
        v_add_u32 {v(vSt)}, {s(sT0)}, {v(vSt)}
        s_add_u32 {s(sT0)}, {s(sT0)}, 65536
        v_add_u32 {v(vStC)}, {s(sT0)}, {v(vStC)}
        s_lshl_b32 {s(sIB)}, {s(sL)}, 23
        s_add_u32 {s(sIB)}, {s(sIB)}, {HB}
        s_mul_i32 {s(sOB)}, {s(sB)}, {PART}
        s_add_u32 {s(sOB)}, {s(sOB)}, {PB}
        s_lshl_b32 {s(sBUF)}, {s(sW)}, 10
        s_mov_b32 {s(sC)}, {f2u(20**-0.5*math.log2(math.e))}
        s_mov_b32 {s(sPRE)}, 0""")
        self.pstamp(7)
        self.wait_grid()
        self.get_par()
        self.flag_lines(vFl, u0, True, 30, 3)
        k.many(self.near(sIN, sIB))
        self.warm_code('L_Bh0', 'L_roleR', FB)
        self.pstamp(8)
        k(f"""s_mov_b32 {s(sPEND)}, 0
        s_lshl_b32 {s(sT0)}, {s(sW)}, 2
        v_mov_b32 {v(vRdy)}, {s(sT0)}
        v_and_b32 {v(vRdr)}, 12, {v(vL)}""")
        fl_ld = f"buffer_load_dword {v(FL)}, {v(vFl)}, {WS}, 0 offen sc1"
        flat = lambda L: [x for g in L for x in (g if isinstance(g, (list, tuple)) else [g]) if isinstance(x, str)]
        flag = ["s_waitcnt vmcnt(0)"] + self.put_flag(2, s(sS))
        self.sST = 32

        def dma(mt, gap):
            out = []
            for i in range(5 * mt, 5 * mt + 5):
                out += [f"s_add_u32 m0, {s(sBUF)}, {XT+4096*i}", f"s_add_u32 {s(sT0)}, {s(sIN)}, {(i>>1)*16384+(i&1)*4096}",
                        f"buffer_load_dwordx4 {v(vT16)}, {WS}, {s(sT0)} offen sc1 lds"] + gap
            return out

        P = ACC + 16
        RDY = OB + 2560

        def rd(mt, ks):
            return f"ds_read_b128 {v(FB+4*(ks%3),4)}, {v(vXr1 if ks & 1 else vXr0)} offset:{XT+mt*20480+(ks>>1)*1024}"

        def steps(mt, k0, k1):
            out = []
            for ks in range(k0, k1):
                f = v(FB + 4 * (ks % 3), 4)
                for i, m in enumerate((3, 0, 1, 2)):
                    acc = v(ACC + 4 * m, 4)
                    x, y = (f, W(m, ks)) if m == 2 else (W(m, ks), f)
                    out.append((f"v_mfma_f32_16x16x32_bf16 {acc}, {x}, {y}, {acc if ks else 0}",
                                f"need {v(FB+4*((ks+1)%3),4)}" if i == 3 and ks + 1 < k1 else None, rd(mt, ks + 2) if i == 0 and ks + 2 < 20 else None))
            return out

        def owed():
            l = self.lab('owed')
            k.many([f"need {v(FL)}", f"s_cmp_eq_u32 {s(sPEND)}, 0", f"s_cbranch_scc1 {l}"] + flag + [f"s_mov_b32 {s(sPEND)}, 0", l + ':'])

        def fetch(mt, ahead, ms, queues=(), fill=0):
            pre, back = self.lab('pre'), self.lab('back')
            k(f"""s_add_u32 {s(sT1)}, {s(sS)}, {s(sPRE)}
            s_add_u32 {s(sT1)}, {s(sT1)}, {ahead+1}
            v_cmp_gt_u32 vcc, {s(sT1)}, {v(FL)}
            s_cbranch_vccz {pre}""")
            n0 = len(k.items)
            pack(k, ms, queues, fill=fill)
            body = [it.text for kind, it in k.items[n0:]]
            k(back + ':')
            q = [f"s_movk_i32 {s(sPRE)}, 1000"] + dma(mt, []) + ([f"s_add_u32 {s(sIB)}, {s(sIB)}, {HSEG}"] + self.near(sIN, sIB) if mt else [])
            out = []
            for x in body:
                out.append(x)
                if x.startswith('v_mfma'):
                    out += q[:3]
                    q = q[3:]
            self.ool.append([pre + ':'] + out + q + [f"s_branch {back}"])

        def attn1(mt):
            KC, cur, T = (KA, KB)[mt], 2 * (1 - mt), P + 8
            return f"""v_mfma_f32_16x16x4_f32 {v(T,4)}, {v(ACC+14)}, {v(vE)}, 0
            v_cvt_pk_bf16_f32 {v(Q+2)}, {v(ACC+12)}, 0
            v_cvt_pk_bf16_f32 {v(KC+2)}, {v(ACC+13)}, 0
            v_cvt_pk_bf16_f32 {v(Q)}, {v(ACC)}, {v(ACC+1)}
            v_cvt_pk_bf16_f32 {v(Q+1)}, {v(ACC+2)}, {v(ACC+3)}
            v_mov_b32 {v(Q+3)}, 0
            v_cvt_pk_bf16_f32 {v(KC)}, {v(ACC+4)}, {v(ACC+5)}
            v_cvt_pk_bf16_f32 {v(KC+1)}, {v(ACC+6)}, {v(ACC+7)}
            v_mfma_f32_16x16x32_bf16 {v(P+4*mt,4)}, {v((KB, KA)[mt],4)}, {v(Q,4)}, {v(P+4*mt,4)}
            v_cvt_pk_bf16_f32 {v(VM+cur)}, {v(ACC+8)}, {v(ACC+9)}
            v_cvt_pk_bf16_f32 {v(VM+cur+1)}, {v(ACC+10)}, {v(ACC+11)}
            v_mfma_f32_16x16x32_bf16 {v(P+4-4*mt,4)}, {v(KC,4)}, {v(Q,4)}, {v(P+4-4*mt,4)}"""

        def attn2(mt):
            cur, T, O = 2 * (1 - mt), P + 8, P + 12
            out = f"""v_mov_b32 {v(vMk0)}, {v(vL16)}
            v_cvt_pk_bf16_f32 {v(VE+cur)}, {v(T)}, {v(T+1)}
            v_cvt_pk_bf16_f32 {v(VE+cur+1)}, {v(T+2)}, {v(T+3)}
            v_or_b32 {v(VE+cur)}, {v(vOne)}, {v(VE+cur)}
            v_or_b32 {v(VE+cur+1)}, {v(vOne)}, {v(VE+cur+1)}
            v_max3_f32 {v(T)}, {v(P)}, {v(P+1)}, {v(P+2)}
            v_max3_f32 {v(T+1)}, {v(P+4)}, {v(P+5)}, {v(P+6)}
            v_max3_f32 {v(T)}, {v(T)}, {v(P+3)}, {v(P+7)}
            v_max_f32 {v(T)}, {v(T)}, {v(T+1)}
            v_mov_b32 {v(T+1)}, {v(T)}
            v_permlane16_swap_b32 {v(T)}, {v(T+1)}
            v_max_f32 {v(T)}, {v(T)}, {v(T+1)}
            v_mov_b32 {v(T+1)}, {v(T)}
            v_permlane32_swap_b32 {v(T)}, {v(T+1)}
            v_max_f32 {v(T)}, {v(T)}, {v(T+1)}
            v_mul_f32 {v(T)}, {s(sC)}, {v(T)}""".split('\n')
            out += [f"v_fma_f32 {v(P+r)}, {v(P+r)}, {s(sC)}, -{v(T)}" for r in range(8)] + [f"v_exp_f32 {v(P+r)}, {v(P+r)}" for r in range(8)] + \
                [f"v_cvt_pk_bf16_f32 {v(P+r)}, {v(P+2*r)}, {v(P+2*r+1)}" for r in range(4)]
            out += [[f"v_mfma_f32_16x16x32_bf16 {v(O+4,4)}, {v(VE,4)}, {v(P,4)}, 0", "s_nop 2", f"v_mfma_f32_16x16x32_bf16 {v(O,4)}, {v(VM,4)}, {v(P,4)}, 0"],
                    f"v_rcp_f32 {v(O+5)}, {v(O+5)}"] + [f"v_mul_f32 {v(O+r)}, {v(O+r)}, {v(O+5)}" for r in (4, 0, 1, 2, 3)]
            out += [f"v_cvt_pk_bf16_f32 {v(O+4)}, {v(O+4)}, {v(O+4)}", f"v_cvt_pk_bf16_f32 {v(O)}, {v(O)}, {v(O+1)}",
                    f"v_cvt_pk_bf16_f32 {v(O+1)}, {v(O+2)}, {v(O+3)}", f"ds_write_b16 {v(vOw2)}, {v(O+4)} offset:{OB+2048}",
                    f"ds_write_b64 {v(vOw)}, {v(O,2)} offset:{OB}", 5, "s_barrier",
                    f"ds_read_b64 {v(OF2,2)}, {v(vL8)} offset:{OB+2048}", f"ds_read_b128 {v(Q,4)}, {v(vL16)} offset:{OB}",
                    f"ds_read_b128 {v(OF1,4)}, {v(vL16)} offset:{OB+1024}"]
            return [x.strip() if isinstance(x, str) else x for x in out]

        def outp(mt, vi, ac):
            k16 = [(f"v_mfma_f32_16x16x16_bf16 {v(ac[t],4)}, {WO(5*vi+t,2,2)}, {v(OF2,2)}, 0", None, None) for t in range(5)]
            k32, tail = [], []
            for part, tiles in ((0, (0, 1)), (1, (2, 3)), (2, (4,))):
                k32 += [(f"v_mfma_f32_16x16x32_bf16 {v(ac[t],4)}, {WO(5*vi+t,kk,4)}, {v((Q, OF1)[kk],4)}, {v(ac[t],4)}", None, None)
                        for kk in range(2) for t in tiles]
                b = ac[tiles[0]]
                tail += [f"v_cvt_pk_bf16_f32 {v(b+i)}, {v(b+2*i)}, {v(b+2*i+1)}" for i in range(2 * len(tiles))]
                tail.append(f"buffer_store_dwordx4 {v(b,4)}, {v(vSt)}, {WS}, {s((sO1, sO2)[part])} offen offset:{1024*vi} sc1" if part < 2 else
                            f"buffer_store_dwordx2 {v(b,2)}, {v(vStC)}, {WS}, {s(sOUT)} offen offset:{1024*vi+512*mt} sc1")
            return k16, k32, tail

        def masks(mt):
            return [f"ds_read_b128 {v(P+4*mt,4)}, {v(vL16 if mt else vMk0)} offset:{MK}", f"ds_read_b128 {v(P+4-4*mt,4)}, {v(vL16)} offset:{MK+1024}"]
        done = [f"s_add_u32 {s(sS)}, {s(sS)}, 1", f"s_mov_b32 {s(sPEND)}, 1"]
        pool = [P + 4 * t for t in range(5)]

        for mt in range(2):
            k(f"""L_Bh{mt}:
            s_cmp_lg_u32 {s(sPRE)}, 0
            s_cbranch_scc1 L_Bhave{mt}
            {fl_ld}""")
            owed()
            k(f"s_add_u32 {s(sT1)}, {s(sS)}, 1")
            self.check_flags(FL, sT1, [fl_ld], 30)
            k.many(dma(mt, []) + ([f"s_add_u32 {s(sIB)}, {s(sIB)}, {HSEG}"] + self.near(sIN, sIB) if mt else []))
            k(f"s_waitcnt vmcnt(0)\nL_Bhave{mt}:")
            self.stamp(0)
            k(f"s_waitcnt vmcnt(6) lgkmcnt(0)\ns_barrier\ns_mov_b32 {s(sPRE)}, 0")
            self.stamp(1)
            k.many([rd(mt, 0), rd(mt, 1)])
            q = [1 + 4 * o.bsamp, fl_ld]
            pack(k, steps(mt, 0, o.bpre), (q,))
            owed()
            q = masks(mt)
            fetch(1 - mt, 1, steps(mt, o.bpre, 20), (q,), fill=3)
            k("s_waitcnt vmcnt(0)")
            k(f"L_Be{mt}:")
            self.tp(7)
            self.tp(0)
            k(f"""v_mov_b32 v2, {s(sPRE)}
            ds_write_b32 {v(vRdy)}, v2 offset:{RDY}
            {fl_ld}""")
            self.stamp(2)
            a1 = attn1(mt).split('\n')
            k.many(a1[:8] + ["s_barrier", f"ds_read_b32 v2, {v(vRdr)} offset:{RDY}"] + a1[8:])
            k.many((self.near(sOUT, sOB) + [f"s_add_u32 {s(sOB)}, {s(sOB)}, {MB}"] if mt == 0 else []) +
                   [f"s_add_u32 {s(sO1)}, {s(sOUT)}, {16384*mt}", f"s_add_u32 {s(sO2)}, {s(sOUT)}, {16384*(2+mt)}"])
            a2 = attn2(mt)
            k.many(a2[:5] + ["v_cmp_eq_u32 vcc, 0, v2", f"s_cbranch_vccz L_Bi{mt}"])
            k.many(flat(a2[5:]))
            self.stamp(3)
            owed()
            x0, x1 = outp(mt, 0, [ACC + 4 * t for t in range(4)] + [FB]), outp(mt, 1, pool)
            fetch(1 - mt, 1, x0[0] + x1[0])
            tail = x0[2] + x1[2]
            pack(k, x0[1] + x1[1], (tail,), ordered=True)
            k.many(flat(tail) + done)
            self.stamp(4)
            if mt:
                self.stamps_out(5, FB, half=True)
        k(f"s_cmp_lt_u32 {s(sS)}, 128\ns_cbranch_scc1 L_Bh0")
        k.many(flag)
        k("s_endpgm")
        for mt in range(2):
            k(f"L_Bi{mt}:\ns_mov_b32 {s(sPRE)}, 0")
            self.tp(1)
            k.many([rd(1 - mt, 0), rd(1 - mt, 1)])
            q = attn2(mt)[5:]
            k.many(q[:4])
            q = q[4:]
            pack(k, steps(1 - mt, 0, o.bi0), (q,))
            self.tp(2)
            owed()
            self.tp(3)
            fetch(mt, 2, steps(1 - mt, o.bi0, o.bi0 + 2), (q,))
            self.tp(4)
            pack(k, steps(1 - mt, o.bi0 + 2, o.bw0), (q,))
            k.many(flat(q))
            self.tp(5)
            x0, x1 = outp(mt, 0, pool), outp(mt, 1, pool)
            pack(k, x0[0] + steps(1 - mt, o.bw0, o.bw0 + 1) + x0[1] + steps(1 - mt, o.bw0 + 1, o.bw0 + 3), (x0[2],), ordered=True)
            k.many(x0[2])
            q = x1[2] + masks(1 - mt)
            pack(k, x1[0] + steps(1 - mt, o.bw0 + 3, o.bw0 + 4) + x1[1] + steps(1 - mt, o.bw0 + 4, 20), (q,), ordered=True, fill=3)
            self.tp(6)
            k.many(flat(q) + done + ["s_waitcnt vmcnt(6)", f"s_branch L_Be{1-mt}"])
        self.flush_ool()

    def role_R(self):
        k, o = self.k, self.o
        k("L_roleR:")
        if not self.role_gate('R'):
            return
        V = Alloc(4, 256)
        S = Alloc(S_FREE, 102)
        LD, LC, SEL, F, RES, HN, T = V(36, 4), V(12, 4), V(12, 4), V(12, 4), V(6, 2), V(6, 2), V(2, 2)
        vPa, vPc, vRa, vRc, vHa, vHc, vFl, FL = V(2), V(2), V(), V(), V(2), V(2), V(), V()
        sIN, sIB, sRES, sXD, sHB, sHD, sK, sLO, sHI, sHP = (S() for _ in range(10))
        self.arrive0(0)
        k(f"""s_and_b32 {s(sT0)}, {s(sT)}, 1
        s_lshl_b32 {s(sK)}, {s(sL)}, 1
        s_add_u32 {s(sK)}, {s(sK)}, {s(sT0)}
        s_cmp_eq_u32 {s(sK)}, 0
        s_cselect_b32 {s(S_B)}, {s(P_X)}, {s(P_WS)}
        s_cselect_b32 {s(S_B+1)}, {s(P_X+1)}, {s(P_WS+1)}
        s_cselect_b32 {s(S_B+2)}, {XSZ}, {s(S_WS+2)}
        s_mov_b32 {s(S_B+3)}, 0x20000
        s_cmp_eq_u32 {s(sK)}, 3
        s_cselect_b32 {s(S_C)}, {s(P_OUT)}, {s(P_WS)}
        s_cselect_b32 {s(S_C+1)}, {s(P_OUT+1)}, {s(P_WS+1)}
        s_cselect_b32 {s(S_C+2)}, {XSZ}, {s(S_WS+2)}
        s_mov_b32 {s(S_C+3)}, 0x20000
        s_mov_b32 {s(sRES)}, 0
        s_mov_b32 {s(sXD)}, {X1B}
        s_mov_b32 {s(sHB)}, {HB}""")
        for kk, (r, x, h) in ((1, (X1B, X2B, HA + 8*MB)), (2, (X2B, X1B + XSZ, HB + 8*MB)), (3, (X1B + XSZ, 0, 0))):
            k(f"""s_cmp_eq_u32 {s(sK)}, {kk}
            s_cselect_b32 {s(sRES)}, {r}, {s(sRES)}
            s_cselect_b32 {s(sXD)}, {x}, {s(sXD)}
            s_cselect_b32 {s(sHB)}, {h}, {s(sHB)}""")
        ln, u0, u1 = F, F + 1, F + 2
        k(f"""s_cmp_eq_u32 {s(sK)}, 1
        s_cselect_b32 {s(sHP)}, 0x2000, 0""")
        self.wait_grid()
        self.get_par(sHP)
        k(f"""s_xor_b32 {s(sHP)}, {s(sHP)}, {s(sPAR)}
        s_mov_b32 {s(sIB)}, {PB}
        s_bitcmp0_b32 {s(sK)}, 0
        s_cselect_b32 {s(sIB)}, {PA}, {s(sIB)}
        s_cselect_b32 {s(sT1)}, 24, 28
        s_cselect_b32 {s(sT2)}, 15, 7""")
        self.flag_lines(vFl, u0, True, s(sT1), s(sT2))
        k(f"""v_and_b32 {v(ln)}, 63, v0
        s_lshl_b32 {s(sT0)}, {s(sHG)}, 2
        s_add_u32 {s(sT0)}, {s(sT0)}, {s(sW)}
        s_mul_i32 {s(sT1)}, {s(sT0)}, 1280
        v_lshl_add_u32 {v(vRa)}, {v(ln)}, 4, {s(sT1)}
        v_lshl_add_u32 {v(vRc)}, {v(ln)}, 2, {s(sT1)}
        v_bfe_u32 {v(u0)}, {v(ln)}, 2, 3
        v_lshlrev_b32 {v(vPa)}, 10, {v(u0)}
        v_lshrrev_b32 {v(u0)}, 5, {v(ln)}
        v_lshl_add_u32 {v(vPa)}, {v(u0)}, 15, {v(vPa)}
        v_and_b32 {v(u0)}, 3, {v(ln)}
        v_lshl_add_u32 {v(vPa)}, {v(u0)}, 4, {v(vPa)}
        s_lshl_b32 {s(sT1)}, {s(sT0)}, 6
        v_add_u32 {v(vPa)}, {s(sT1)}, {v(vPa)}
        v_add_u32 {v(vPa+1)}, 16384, {v(vPa)}
        v_lshrrev_b32 {v(u0)}, 3, {v(ln)}
        v_lshlrev_b32 {v(vPc)}, 10, {v(u0)}
        v_and_b32 {v(u0)}, 7, {v(ln)}
        v_lshl_add_u32 {v(vPc)}, {v(u0)}, 2, {v(vPc)}
        s_lshl_b32 {s(sT1)}, {s(sT0)}, 5
        s_add_u32 {s(sT1)}, {s(sT1)}, 65536
        v_add_u32 {v(vPc)}, {s(sT1)}, {v(vPc)}
        v_add_u32 {v(vPc+1)}, 512, {v(vPc)}
        s_lshr_b32 {s(sT1)}, {s(sT0)}, 3
        s_mul_i32 {s(sT1)}, {s(sT1)}, 10
        s_and_b32 {s(sT0)}, {s(sT0)}, 7
        s_lshl_b32 {s(sT2)}, {s(sT0)}, 7""")
        for mt in range(2):
            k(f"""v_lshrrev_b32 {v(u0)}, 3, {v(ln)}
            v_add3_u32 {v(vHa+mt)}, {v(u0)}, {s(sT1)}, {20*mt}
            {self.tile_kb(vHa+mt, u0)}
            v_and_b32 {v(u0)}, 7, {v(ln)}
            v_xor_b32 {v(u0)}, {s(sT0)}, {v(u0)}
            v_lshl_add_u32 {v(u0)}, {v(u0)}, 4, {s(sT2)}
            v_add_u32 {v(vHa+mt)}, {v(vHa+mt)}, {v(u0)}
            v_lshrrev_b32 {v(u0)}, 5, {v(ln)}
            v_add3_u32 {v(vHc+mt)}, {v(u0)}, {s(sT1)}, {20*mt+8}
            {self.tile_kb(vHc+mt, u0)}
            v_bfe_u32 {v(u0)}, {v(ln)}, 2, 3
            v_xor_b32 {v(u0)}, {s(sT0)}, {v(u0)}
            v_lshl_add_u32 {v(u0)}, {v(u0)}, 4, {s(sT2)}
            v_and_b32 {v(u1)}, 3, {v(ln)}
            v_lshl_add_u32 {v(u0)}, {v(u1)}, 2, {v(u0)}
            v_add_u32 {v(vHc+mt)}, {v(vHc+mt)}, {v(u0)}""")
        k(f"""v_bfe_u32 {v(u0)}, {v(ln)}, 2, 2
        v_lshrrev_b32 {v(u1)}, 4, {v(ln)}
        v_cmp_eq_u32 vcc, {v(u0)}, {v(u1)}
        v_and_b32 {v(u0)}, 1, {v(ln)}
        v_lshlrev_b32 {v(u0)}, 4, {v(u0)}
        v_mov_b32 {v(u1)}, 0x3f80
        v_lshlrev_b32 {v(u1)}, {v(u0)}, {v(u1)}
        v_cndmask_b32 {v(u1)}, 0, {v(u1)}, vcc
        v_and_b32 {v(u0)}, 2, {v(ln)}
        v_cmp_eq_u32 vcc, 0, {v(u0)}
        v_cndmask_b32 {v(SEL)}, 0, {v(u1)}, vcc
        v_xor_b32 {v(SEL+1)}, {v(SEL)}, {v(u1)}
        v_mov_b32 {v(SEL+6)}, {v(SEL)}
        v_mov_b32 {v(SEL+7)}, {v(SEL+1)}
        v_mov_b32 {v(FL)}, 0""")
        for r in (SEL + 2, SEL + 3, SEL + 4, SEL + 5, LC + 9, LC + 10, LC + 11):
            k(f"v_mov_b32 {v(r)}, 0")
        for r in range(4):
            k(f"v_mov_b32 {v(SEL+8+r)}, {v(SEL)}")
        fl_ld = f"buffer_load_dword {v(FL)}, {v(vFl)}, {WS}, 0 offen sc1"
        flag = ["s_waitcnt vmcnt(0)"] + self.put_flag(T, s(sS))
        self.sST = 32
        def loads(mt):
            out = self.near(sIN, sIB)
            for p in range(8):
                out += [f"buffer_load_dwordx4 {v(LD+4*p,4)}, {v(vPa+mt)}, {WS}, {s(sIN)} offen sc1",
                        f"buffer_load_dword {v(LC+p)}, {v(vPc+mt)}, {WS}, {s(sIN)} offen sc1", f"s_add_u32 {s(sIN)}, {s(sIN)}, {PART}"]
            return out + [f"buffer_load_dwordx4 {v(LD+32,4)}, {v(vRa)}, {s(S_B,4)}, {s(sRES)} offen sc1",
                          f"buffer_load_dword {v(LC+8)}, {v(vRc)}, {s(S_B,4)}, {s(sRES)} offen offset:1024 sc1",
                          f"s_add_u32 {s(sRES)}, {s(sRES)}, {TILE//2}"] + ([f"s_add_u32 {s(sIB)}, {s(sIB)}, {MB}"] if mt else [])
        if o.wcode:
            self.hold()
        self.warm_code('L_Rseg', 'L_textend', LD)
        k("L_Rseg:")
        for mt in range(2):
            k(f"""s_add_u32 {s(sT1)}, {s(sS)}, 1
            v_cmp_gt_u32 vcc, {s(sT1)}, {v(FL)}
            s_cbranch_vccz L_Rpre{mt}
            {fl_ld}""")
            k.many(flag)
            self.check_flags(FL, sT1, [fl_ld], 40)
            tot = []
            for p in range(9):
                tot += [f"v_mfma_f32_16x16x32_bf16 {v(F+4*hh,4)}, {v(SEL+4*hh,4)}, {v(LD+4*p,4)}, {v(F+4*hh,4) if p else 0}" for hh in range(2)]
                if p % 4 == 3 or p == 8:
                    tot.append(f"v_mfma_f32_16x16x32_bf16 {v(F+8,4)}, {v(SEL+8,4)}, {v(LC+4*(p//4),4)}, {v(F+8,4) if p > 3 else 0}")
            self.stamp(0)
            k.many(loads(mt) + tot + [f"L_Rsum{mt}:"])
            self.ool.append([f"L_Rpre{mt}:"] + loads(mt) + ["s_waitcnt vmcnt(18)"] + flag[1:] + tot + [f"s_branch L_Rsum{mt}"])
            self.ool.append([f"L_Rlast{mt}:", f"need {v(FL)}", f"s_branch L_Rnext{mt}"])
            k(fl_ld)
            k.many(self.near(sHD, sHB, sHP))
            self.stamp(1)
            for i in range(5):
                k(f"v_cvt_pk_bf16_f32 {v(RES+i)}, {v(F+2*i)}, {v(F+2*i+1)}")
            k(f"""buffer_store_dwordx4 {v(RES,4)}, {v(vRa)}, {s(S_C,4)}, {s(sXD)} offen sc1
            buffer_store_dword {v(RES+4)}, {v(vRc)}, {s(S_C,4)}, {s(sXD)} offen offset:1024 sc1
            s_add_u32 {s(sXD)}, {s(sXD)}, {TILE//2}
            s_cmp_eq_u32 {s(sK)}, 3
            s_cbranch_scc1 L_Rlast{mt}""")
            self.stamp(2)
            self.layernorm(RES, F, T, 5, HN)
            k(f"""need {v(FL)}
            buffer_store_dwordx4 {v(HN,4)}, {v(vHa+mt)}, {WS}, {s(sHD)} offen sc1
            buffer_store_dword {v(HN+4)}, {v(vHc+mt)}, {WS}, {s(sHD)} offen sc1
            L_Rnext{mt}:""")
            self.stamp(3)
            if mt:
                self.stamps_out(4, F, half=True)
            k(f"s_add_u32 {s(sS)}, {s(sS)}, 1")
        k(f"""s_add_u32 {s(sHB)}, {s(sHB)}, {HSEG}
        s_cmp_lt_u32 {s(sS)}, 128
        s_cbranch_scc1 L_Rseg""")
        k.many(flag)
        self.pstamp(11)
        k("s_endpgm")
        self.flush_ool()

    def build(self):
        self.prologue()
        self.role_C()
        self.role_T()
        self.role_B()
        self.role_R()
        self.flush_ool()
        self.k("L_textend:")
        body = self.k.text()
        if self.o.cut:
            import re
            def cut(body, a, b, pat):
                i, j = body.index(a), (body.index(b) if b else len(body))
                return body[:i] + re.sub(pat, '', body[i:j]) + body[j:]
            st, ld, dm = r'    buffer_store_dwordx[24] .*sc1\n', r'    buffer_load_dwordx[24] v\[.*sc1\n', r'    buffer_load_dwordx4 .* lds\n'
            for c in self.o.cut:
                body = cut(body, *{'1': ('L_Tseg:', 'L_roleB:', st), '2': ('L_Bh0:', 'L_roleR:', st), '3': ('L_Rseg:', None, ld),
                                   '4': ('L_Rseg:', None, st), '5': ('L_Bh0:', 'L_roleR:', dm), '6': ('L_Tseg:', 'L_roleB:', dm),
                                   '7': ('L_Ctop3:', 'L_roleT:', dm)}[c])
        ref = open(os.path.join(os.path.dirname(os.path.abspath(__file__)), '..', NAME + '.s.ref')).read()
        head = ref[:ref.index('; Override launch')]
        return (head + "; Generated by gen/gen.py (persistent role-specialised kernel; one workgroup per CU).\n"
                "; @launch grid=(256,1,1) block=(256,1,1) lds=163840\n"
                '.amdgcn_target "amdgcn-amd-amdhsa--gfx950"\n.text\n'
                f".globl {NAME}_kernel\n.p2align 8\n.type {NAME}_kernel,@function\n{NAME}_kernel:\n" + body +
                f""".section .rodata,"a"
.p2align 6
.amdhsa_kernel {NAME}_kernel
  .amdhsa_next_free_vgpr 512
  .amdhsa_next_free_sgpr 102
  .amdhsa_accum_offset 256
  .amdhsa_group_segment_fixed_size 0
  .amdhsa_kernarg_size 104
  .amdhsa_user_sgpr_count 2
  .amdhsa_user_sgpr_kernarg_segment_ptr 1
  .amdhsa_system_sgpr_workgroup_id_x 1
  .amdhsa_float_denorm_mode_32 3
.end_amdhsa_kernel
""")


if __name__ == '__main__':
    o = Opt()
    out = f'/code/{NAME}.s'
    for arg in sys.argv[1:]:
        key, val = arg.split('=')
        if key == 'out':
            out = val
        else:
            setattr(o, key, type(getattr(o, key))(int(val)) if not isinstance(getattr(o, key), str) else val)
    NT = 'nt ' if o.nt else ''
    g = Gen(o)
    txt = g.build()
    open(out, 'w').write(txt)
    print(out, len(txt), 'bytes', g.k.n_ins, 'instructions', g.k.n_nop, 'nops')
```
